```python
import torch

def _softmax(x, axis=-1):
    return torch.softmax(x, dim=axis)
def _gelu(x):
    return torch.nn.functional.gelu(x, approximate="tanh")
def _silu(x):
    return torch.nn.functional.silu(x)
def _sigmoid(x):
    return torch.sigmoid(x)
def _layernorm(x, axis=-1, eps=1e-5):
    m = x.mean(dim=axis, keepdim=True)
    v = x.var(dim=axis, keepdim=True, unbiased=False)
    return (x - m) / torch.sqrt(v + eps)
def _scatter_add(tgt, idx, src, axis=0):
    return tgt.clone().index_add_(axis, idx, src)
def _segment_sum(src, seg, n):
    out = torch.zeros((n,) + src.shape[1:], dtype=src.dtype)
    return out.index_add_(0, seg, src)
def _pad(x, pw):
    flat = tuple(v for pair in reversed(pw) for v in pair)
    return torch.nn.functional.pad(x, flat)

kernel_name = 'gated_mix__grouped_kv_mqa__ssm_conv_h3__prompt'

def setup_inputs():

    _w = (lambda a: (lambda t: t.to(torch.bfloat16) if t.is_floating_point() else t)(torch.as_tensor(a)))
    def _A_setup():
        B, S, D, H = 1, 2048, 576, 32
        Dh = D // H
        return {
            "x": _w((lambda *s: torch.randn(*s, dtype=torch.bfloat16) * 0.05)(B, S, D)),
            "wq": _w((lambda *s: torch.randn(*s, dtype=torch.bfloat16) * 0.8)(D, H * Dh)),
            "wk": _w((lambda *s: torch.randn(*s, dtype=torch.bfloat16) * 0.8)(D, Dh)),
            "wv": _w((lambda *s: torch.randn(*s, dtype=torch.bfloat16) * 0.05)(D, Dh)),
            "wo": _w((lambda *s: torch.randn(*s, dtype=torch.bfloat16) * 0.05)(H * Dh, D)),
        }
    _A_in = _A_setup()

    def _B_setup():
        B, S, D = 1, 2048, 576
        ks = 4
        return {
            "q": _w((lambda *s: torch.randn(*s, dtype=torch.bfloat16) * 0.05)(B, S, D)),
            "k": _w((lambda *s: torch.randn(*s, dtype=torch.bfloat16) * 0.4)(B, S, D)),
            "v": _w((lambda *s: torch.randn(*s, dtype=torch.bfloat16) * 0.2)(B, S, D)),
            "shift_k": _w((lambda *s: torch.randn(*s, dtype=torch.bfloat16) * 0.4)(D, ks) * 0.5),
            "ssm_k": _w((lambda *s: torch.randn(*s, dtype=torch.bfloat16) * 0.4)(D, S) * (1.0 / S ** 0.5)),
            "ssm_D": _w((lambda *s: torch.randn(*s, dtype=torch.bfloat16) * 0.2)(D)),
        }
    _B_in = _B_setup()

    return {
        "A_x": _A_in["x"],
        "A_wq": _A_in["wq"],
        "A_wk": _A_in["wk"],
        "A_wv": _A_in["wv"],
        "A_wo": _A_in["wo"],
        "B_q": _B_in["q"],
        "B_k": _B_in["k"],
        "B_v": _B_in["v"],
        "B_shift_k": _B_in["shift_k"],
        "B_ssm_k": _B_in["ssm_k"],
        "B_ssm_D": _B_in["ssm_D"],
        "gate_w": _w((lambda *s: torch.randn(*s, dtype=torch.bfloat16) * 0.05)(576) * 16.0),
    }

def reference(A_x, A_wq, A_wk, A_wv, A_wo, B_q, B_k, B_v, B_shift_k, B_ssm_k, B_ssm_D, gate_w):
    def _A_ref(x, wq, wk, wv, wo):
        B, S, D = x.shape
        H = 32
        Dh = D // H
        q = (lambda x, *d: x.permute(*d))((x @ wq).reshape(B, S, H, Dh), 0, 2, 1, 3)
        k = x @ wk
        v = x @ wv
        scores = torch.einsum("bhqd,bkd->bhqk", q, k) * (Dh ** -0.5)
        p = _softmax(scores, axis=-1)
        o = torch.einsum("bhqk,bkd->bhqd", p, v)
        return (lambda x, *d: x.permute(*d))(o, 0, 2, 1, 3).reshape(B, S, H * Dh) @ wo

    def _B_ref(q, k, v, shift_k, ssm_k, ssm_D):
        B, S, D = q.shape
        ks = shift_k.shape[-1]
        k_pad = _pad(k, ((0, 0), (ks - 1, 0), (0, 0)))
        k_shift = torch.zeros_like(k)
        for t in range(ks):
            k_shift = k_shift + k_pad[:, t:t + S, :] * shift_k[:, ks - 1 - t][None, None, :]
        kv = k_shift * v
        L = 2 * S
        kv_pad = _pad(kv, ((0, 0), (0, S), (0, 0)))
        kf_pad = _pad(ssm_k, ((0, 0), (0, S)))
        kv_f = (lambda x, axes=(-2,-1): torch.fft.rfft2(x.float(), dim=axes))(kv_pad[:, None, :, :], axes=(1, 2))
        kf_f = (lambda x, axes=(-2,-1): torch.fft.rfft2(x.float(), dim=axes))(kf_pad[:, None, :], axes=(1, 2))
        kf_f = (lambda x, *d: x.permute(*d))(kf_f, 1, 2, 0)
        y_f = kv_f * kf_f[None, :, :, :]
        y = (lambda x, s, axes=(-2,-1): torch.fft.irfft2(x, s=s, dim=axes).to(torch.bfloat16))(y_f, (1, L), axes=(1, 2))[:, 0, :S, :]
        y = y + kv * ssm_D[None, None, :]
        return q * y

    x = A_x
    g = _sigmoid((x * gate_w).sum(-1, keepdims=True))
    a = _A_ref(x, A_wq, A_wk, A_wv, A_wo)
    b = _B_ref(x, B_k, B_v, B_shift_k, B_ssm_k, B_ssm_D)
    return g * a + (1 - g) * b
```

```python
class Asm:
    def __init__(self):
        self.lines = []
        self._lab = 0

    def __call__(self, s):
        for ln in s.strip("\n").split("\n"):
            self.lines.append("    " + ln.strip() if not ln.strip().endswith(":") else ln.strip())

    def label(self, name):
        self.lines.append(name + ":")

    def newlabel(self, stem):
        self._lab += 1
        return f"L_{stem}_{self._lab}"

    def comment(self, s):
        self.lines.append("    ; " + s)

    def text(self):
        return "\n".join(self.lines) + "\n"


def vr(base, n=1):
    return f"v{base}" if n == 1 else f"v[{base}:{base + n - 1}]"


def sr(base, n=1):
    return f"s{base}" if n == 1 else f"s[{base}:{base + n - 1}]"


def srd(a, d, lo, hi, nbytes):
    a(f"s_mov_b32 s{d}, s{lo}")
    a(f"s_and_b32 s{d + 1}, s{hi}, 0xffff")
    a(f"s_mov_b32 s{d + 2}, {nbytes}")
    a(f"s_mov_b32 s{d + 3}, 0x00020000")


def kernel_begin(a, name):
    a.lines.append(".text")
    a.lines.append(f".globl {name}")
    a.lines.append(".p2align 8")
    a.lines.append(f".type {name},@function")
    a.lines.append(f"{name}:")


def kernel_desc(name, vgpr, sgpr=96):
    acc = (vgpr + 3) // 4 * 4
    return f""".section .rodata,"a"
.p2align 6
.amdhsa_kernel {name}
  .amdhsa_next_free_vgpr {vgpr}
  .amdhsa_next_free_sgpr {sgpr}
  .amdhsa_accum_offset {acc}
  .amdhsa_group_segment_fixed_size 0
  .amdhsa_kernarg_size 120
  .amdhsa_user_sgpr_count 2
  .amdhsa_user_sgpr_kernarg_segment_ptr 1
  .amdhsa_system_sgpr_workgroup_id_x 1
  .amdhsa_float_denorm_mode_32 3
  .amdhsa_float_denorm_mode_16_64 3
.end_amdhsa_kernel
"""
```

```python
import os, math, struct
from asmlib import *
from layout import *

env = lambda k, d: int(os.environ.get(k, str(d)))
DIAG = env("DIAG", 0)
GD = env("GD", 0)
GDS = [int(x) for x in os.environ.get("GDS", "5,1").split(",")]
BRANCH_B = env("BB", 0)
PRIOG = env("PRIOG", 2)
SPIN = 20000

LANE = 1
VK, VKN, VK2, VK2N, VV, VVN = 2, 3, 4, 5, 6, 7
L16, L8, VSL = 8, 9, 10
T0, T1, T2, T3, T4 = 11, 12, 13, 14, 15
K1F, K2F, VA, VB, P = 16, 20, 24, 28, 32
SB = [40, 56]
O, NEGM, Q1, QV = [72, 116], [88, 132], [104, 148], [108, 152]
VCNT, VONE, VDMA = 160, 161, 162
TAG = 164
PL = 166
VWO, VWOE, VWOL, VWOLE, VROW, VZ, VG = 174, 175, 176, 177, 178, 179, 180
XR = 184
NVGPR = 256
VDX0, VDX1, VDW0, VDW1, VDE, VDK = 16, 17, 18, 19, 20, 21
VA0, VXB, VBX, GW = 22, 23, 24, 30
FR, ACC, PKD = 40, 72, 88

sWS, sTAG, sOUT, sWO = 4, 6, 8, 10
SRD_WS, SRD_DMA = 12, 16
sXB = 20
sREM = 23
sWAVE, sPB, sHQ, sSTAGE, sG, sT0 = 24, 25, 26, 27, 28, 29
sHALF = 30
sT1, sT2, sCUR, sNXT, sKH, sRT0, sL, sLD = 32, 33, 34, 35, 36, 37, 38, 39
sDBG = 40
sGSTEP, sLSTEP = 42, 43
sST = 44
sX, sWQ, sWK, sWV = 64, 66, 68, 70
sGW = 72
sXG, sWG = 74, 75
SRD_X, SRD_WQ, SRD_KVW, SRD_GW = 76, 80, 84, 88
sST0, sI, sCK, sT3, sT4, sSUB = 92, 93, 94, 95, 96, 97
sEX = 98
sN = 100
SRD_WO, SRD_OUT = SRD_WQ, SRD_KVW
SRD_J = SRD_GW
sJOB, sCH = 101, 3
sBP = 64
sDP = sGW

SLOT = 17408
L_WKV = 7 * SLOT
L_XK78 = L_WKV + 36864
L_CNT = L_XK78 + 4096
QPITCH = 152
L_QS = 40960
C_TEAM, C_KVFREE, C_RDY, C_G0DONE, C_S3, C_S2, C_RED = 0, 4, 8, 20, 24, 28, 32
GROUPS = [(0, 3), (3, 7), (7, 9)]
PAIR = 2 * STAGE
L_WOI = 0
L_XT = 82944
L_ZT = L_XT + 10240
L_EX = 3 * PAIR
L_OT = 0

QSCALE = struct.unpack("<I", struct.pack("<f", math.log2(math.e) / math.sqrt(DH)))[0]
ORDER = "e0 e1 PVb e2 e3 e4 e5 e6 M1 e7 c0 c1 c2 c3 e8 e9 M2 e10 e11 e12 e13 e14 PVa e15 c4 c5 c6 c7"


def f32bits(x):
    return struct.unpack("<I", struct.pack("<f", x))[0]


def stamp(a, i):
    if DIAG:
        a(f"s_memrealtime {sr(sST + 2 * i, 2)}")


def dump_stamps(a):
    if not DIAG:
        return
    lab = a.newlabel("nogd")
    a("s_waitcnt lgkmcnt(0)")
    a(f"s_cmp_lg_u32 s{sWAVE}, {GD}")
    a(f"s_cbranch_scc1 {lab}")
    a(f"s_lshl_b32 s{sT0}, s2, 4")
    a(f"s_add_u32 s{sT0}, s{sT0}, {WS_GD}")
    a("s_mov_b64 exec, 1")
    for i, st in enumerate((0, GDS[1], 9, GDS[0])):
        a(f"v_mov_b32 v{T0}, s{sST + 2 * st}")
        a(f"v_mov_b32 v{T1}, s{sT0}")
        a(f"global_store_dword v{T1}, v{T0}, {sr(sWS, 2)} offset:{4 * i}")
    a.label(lab)


def mfma16(a, d, A, B, C):
    c = "0" if C is None else vr(C, 16)
    a(f"v_mfma_f32_32x32x16_bf16 {vr(d, 16)}, {vr(A, 4)}, {vr(B, 4)}, {c}")


def mfma8(a, d, A, B, C):
    a(f"v_mfma_f32_32x32x8_bf16 {vr(d, 16)}, {vr(A, 2)}, {vr(B, 2)}, {vr(C, 16)}")


def mfma1616(a, d, A, B):
    a(f"v_mfma_f32_16x16x32_bf16 {vr(d, 4)}, {vr(A, 4)}, {vr(B, 4)}, {vr(d, 4)}")


def cnt_add(a, off):
    a("s_mov_b64 exec, 1")
    a(f"ds_add_u32 v{VCNT}, v{VONE} offset:{off}")
    a("s_mov_b64 exec, -1")


def cnt_wait(a, off, target):
    l0, l1 = a.newlabel("cw"), a.newlabel("cwd")
    a(f"s_mov_b32 s{sI}, 0")
    a.label(l0)
    a(f"ds_read_b32 v{T4}, v{VCNT} offset:{off}")
    a(f"s_add_u32 s{sI}, s{sI}, 1")
    a("s_waitcnt lgkmcnt(0)")
    a(f"v_readfirstlane_b32 s{sN}, v{T4}")
    a(f"s_cmp_ge_u32 s{sI}, {SPIN * 64}")
    a(f"s_cbranch_scc1 {l1}")
    a(f"s_cmp_lt_u32 s{sN}, {target}")
    a(f"s_cbranch_scc1 {l0}")
    a.label(l1)


def get_tag(a):
    a(f"s_load_dwordx2 {sr(sTAG, 2)}, {sr(sDBG, 2)}, 0")
    a("s_waitcnt lgkmcnt(0)")
    a(f"v_mov_b32 v{TAG}, s{sTAG}")
    a(f"v_mov_b32 v{TAG + 1}, s{sTAG + 1}")
    l0, l1 = a.newlabel("tg"), a.newlabel("tgd")
    a(f"s_mov_b32 s{sI}, 0")
    a(f"v_mov_b32 v{T4}, 0")
    a.label(l0)
    a(f"v_cmp_eq_u32 vcc, 0, v{TAG}")
    a("s_nop 4")
    a(f"s_cbranch_vccz {l1}")
    a(f"s_add_u32 s{sI}, s{sI}, 1")
    a(f"s_cmp_ge_u32 s{sI}, {SPIN}")
    a(f"s_cbranch_scc1 {l1}")
    a("s_sleep 4")
    a(f"global_load_dwordx2 {vr(TAG, 2)}, v{T4}, {sr(sDBG, 2)} sc1")
    a("s_waitcnt vmcnt(0)")
    a(f"s_branch {l0}")
    a.label(l1)


def put_flag(a, soff):
    a("s_mov_b64 exec, 3")
    a(f"buffer_store_dwordx2 {vr(TAG, 2)}, v{L8}, {sr(SRD_WS, 4)}, s{soff} offen sc1")
    a("s_mov_b64 exec, -1")


def poll_flags(a, soff, vaddr, nld, sleep=6):
    l0, l1 = a.newlabel("pf"), a.newlabel("pfd")
    a(f"s_mov_b32 s{sI}, 0")
    a.label(l0)
    for i in range(nld):
        a(f"buffer_load_dwordx2 {vr(PL + 2 * i, 2)}, v{vaddr}, {sr(SRD_WS, 4)}, s{soff} offen offset:{1024 * i} sc1")
    a(f"s_add_u32 s{sI}, s{sI}, 1")
    a("s_waitcnt vmcnt(0)")
    a(f"v_cmp_ne_u64 vcc, {vr(PL, 2)}, {vr(TAG, 2)}")
    for i in range(1, nld):
        a(f"v_cmp_ne_u64 {sr(sEX, 2)}, {vr(PL + 2 * i, 2)}, {vr(TAG, 2)}")
        a("s_nop 4")
        a(f"s_or_b64 vcc, vcc, {sr(sEX, 2)}")
    a("s_nop 4")
    a(f"s_cbranch_vccz {l1}")
    a(f"s_sleep {sleep}")
    a(f"s_cmp_lt_u32 s{sI}, {SPIN}")
    a(f"s_cbranch_scc1 {l0}")
    a.label(l1)


def next_chunk(a):
    a(f"s_add_u32 s{sCK}, s{sCK}, 1")
    a(f"s_cmp_eq_u32 s{sCK}, 9")
    a(f"s_cselect_b32 s{sCK}, 0, s{sCK}")


def set_chunk(a, idx_reg=None, idx=None):
    if idx is not None:
        a(f"s_add_u32 s{sCK}, s{sST0}, {idx}")
    else:
        a(f"s_add_u32 s{sCK}, s{sST0}, s{idx_reg}")
    a(f"s_sub_u32 s{sT0}, s{sCK}, 9")
    a(f"s_cmp_ge_u32 s{sCK}, 9")
    a(f"s_cselect_b32 s{sCK}, s{sT0}, s{sCK}")


def dma(a, vreg, srd_, soff, m0reg, add=0, sc1=False):
    if add:
        a(f"s_add_u32 s{sT0}, s{m0reg}, {add}")
        a(f"s_mov_b32 m0, s{sT0}")
    else:
        a(f"s_mov_b32 m0, s{m0reg}")
    a("s_nop 0")
    a(f"buffer_load_dwordx4 v{vreg}, {sr(srd_, 4)}, s{soff} offen{' sc1' if sc1 else ''} lds")


def stream(a, i0, n, own_x):
    set_chunk(a, idx=i0)
    a(f"s_lshl_b32 s{sLD}, s{sWAVE}, 11")
    a(f"s_add_u32 s{sLD}, s{sLD}, {i0 * SLOT}")
    a(f"s_mov_b32 s{sT3}, {i0 * SLOT + 16384}")
    lab, l1, l2 = a.newlabel("st"), a.newlabel("stx"), a.newlabel("ste")
    a(f"s_mov_b32 s{sN}, {n}")
    a.label(lab)
    if not own_x:
        a(f"s_cmp_eq_u32 s{sWAVE}, s{sSUB}")
        a(f"s_cbranch_scc1 {l1}")
    a(f"s_lshl_b32 s{sT1}, s{sCK}, 7")
    a(f"s_add_u32 s{sT1}, s{sT1}, s{sXG}")
    dma(a, VDX0, SRD_X, sT1, sLD)
    dma(a, VDX1, SRD_X, sT1, sLD, 1024)
    a.label(l1)
    a(f"s_mul_i32 s{sT1}, s{sCK}, {64 * D * 2}")
    a(f"s_add_u32 s{sT1}, s{sT1}, s{sWG}")
    dma(a, VDW0, SRD_WQ, sT1, sLD, 8192)
    dma(a, VDW1, SRD_WQ, sT1, sLD, 8192 + 1024)
    a(f"s_cmp_lg_u32 s{sWAVE}, s{sSUB}")
    a(f"s_cbranch_scc1 {l2}")
    dma(a, VDE, SRD_WQ, sT1, sT3)
    a.label(l2)
    a(f"s_add_u32 s{sLD}, s{sLD}, {SLOT}")
    a(f"s_add_u32 s{sT3}, s{sT3}, {SLOT}")
    next_chunk(a)
    a(f"s_sub_u32 s{sN}, s{sN}, 1")
    a(f"s_cmp_lg_u32 s{sN}, 0")
    a(f"s_cbranch_scc1 {lab}")


def wpat_rc(a, slot, col):
    a(f"v_mul_u32_u24 v{T1}, 1821, v{slot}")
    a(f"v_lshrrev_b32 v{T1}, 16, v{T1}")
    a(f"v_mul_u32_u24 v{T2}, 36, v{T1}")
    a(f"v_sub_u32 v{T2}, v{slot}, v{T2}")
    a(f"v_bfe_u32 v{T3}, v{T2}, 2, 2")
    a(f"v_and_b32 v{T4}, 3, v{T2}")
    a(f"v_lshrrev_b32 v{col}, 4, v{T2}")
    a(f"v_lshlrev_b32 v{col}, 6, v{col}")
    a(f"v_cmp_gt_u32 vcc, 32, v{T2}")
    a(f"v_lshl_add_u32 v{T2}, v{T4}, 4, v{col}")
    a("s_nop 0")
    a(f"v_cndmask_b32 v{col}, v{col}, v{T2}, vcc")
    a(f"v_cndmask_b32 v{T3}, v{T4}, v{T3}, vcc")
    a(f"v_lshl_add_u32 v{T1}, v{T1}, 2, v{T3}")


def wpat(a, dst, slot):
    wpat_rc(a, slot, dst)
    a(f"v_mul_u32_u24 v{T1}, {D * 2}, v{T1}")
    a(f"v_add_u32 v{dst}, v{dst}, v{T1}")


def wopat(a, dst, dstl, slot):
    wpat_rc(a, slot, dst)
    a(f"v_lshrrev_b32 v{T2}, 1, v{T1}")
    a(f"v_mul_u32_u24 v{T2}, 18, v{T2}")
    a(f"v_and_b32 v{T3}, 1, v{T1}")
    a(f"v_add3_u32 v{T2}, v{T2}, v{T3}, 16")
    a(f"v_mul_u32_u24 v{T2}, {D * 2}, v{T2}")
    a(f"v_add_u32 v{dstl}, v{dst}, v{T2}")
    a(f"v_lshrrev_b32 v{T2}, 4, v{T1}")
    a(f"v_mul_u32_u24 v{T2}, 18, v{T2}")
    a(f"v_and_b32 v{T3}, 3, v{T1}")
    a(f"v_add_u32 v{T2}, v{T2}, v{T3}")
    a(f"v_bfe_u32 v{T3}, v{T1}, 2, 1")
    a(f"v_lshl_add_u32 v{T2}, v{T3}, 3, v{T2}")
    a(f"v_bfe_u32 v{T3}, v{T1}, 3, 1")
    a(f"v_lshl_add_u32 v{T2}, v{T3}, 2, v{T2}")
    a(f"v_mul_u32_u24 v{T2}, {D * 2}, v{T2}")
    a(f"v_add_u32 v{dst}, v{dst}, v{T2}")


def pipelined(a, n, rd, mm, per=3, depth=3):
    for s in range(min(depth, n)):
        rd(s)
    for s in range(n):
        if s + depth < n:
            rd(s + depth)
        a(f"s_waitcnt lgkmcnt({per * min(depth, n - 1 - s)})")
        mm(s)


def afrag32_addr(a, dst, base):
    a(f"v_lshrrev_b32 v{T0}, 5, v{LANE}")
    a(f"v_bfe_u32 v{T1}, v{LANE}, 4, 1")
    a(f"v_bfe_u32 v{T2}, v{LANE}, 2, 2")
    a(f"v_and_b32 v{T3}, 3, v{LANE}")
    a(f"v_lshl_add_u32 v{T4}, v{T1}, 2, v{T3}")
    a(f"v_mul_u32_u24 v{T1}, 1152, v{T0}")
    a(f"v_lshl_add_u32 v{T1}, v{T2}, 6, v{T1}")
    a(f"v_lshl_add_u32 v{dst}, v{T4}, 3, v{T1}")
    a(f"s_lshr_b32 s{sT0}, s{sWAVE}, 1")
    a(f"s_lshl_b32 s{sT0}, s{sT0}, 8")
    a(f"s_add_u32 s{sT0}, s{sT0}, {base}")
    a(f"v_add_u32 v{dst}, s{sT0}, v{dst}")


def afrag16_addr(a, dst, base):
    a(f"v_lshrrev_b32 v{T0}, 4, v{LANE}")
    a(f"v_bfe_u32 v{T2}, v{LANE}, 2, 2")
    a(f"v_and_b32 v{T3}, 1, v{LANE}")
    a(f"v_mul_u32_u24 v{T1}, 1152, v{T0}")
    a(f"v_lshl_add_u32 v{T1}, v{T2}, 4, v{T1}")
    a(f"v_lshl_add_u32 v{dst}, v{T3}, 3, v{T1}")
    a(f"v_add_u32 v{dst}, {base + 512}, v{dst}")


def q_full(a):
    afrag32_addr(a, VA0, 8192)
    a(f"s_and_b32 s{sT1}, s{sWAVE}, 1")
    a(f"s_lshl_b32 s{sT0}, s{sT1}, 5")
    a(f"v_and_b32 v{T1}, 31, v{LANE}")
    a(f"v_add_u32 v{T1}, s{sT0}, v{T1}")
    a(f"v_bfe_u32 v{T2}, v{T1}, 1, 3")
    a(f"v_xor_b32 v{T2}, v{T2}, v{T0}")
    a(f"v_lshlrev_b32 v{T1}, 7, v{T1}")
    for ks in range(4):
        a(f"v_xor_b32 v{T3}, {2 * ks}, v{T2}")
        a(f"v_lshl_add_u32 v{VBX + ks}, v{T3}, 4, v{T1}")
    for j in range(16):
        a(f"v_mov_b32 v{ACC + j}, 0")

    def rd(s):
        f = FR + 8 * (s % 4)
        off = (s // 4) * SLOT
        a(f"ds_read_b64_tr_b16 {vr(f, 2)}, v{VA0} offset:{off + (s % 4) * 2304}")
        a(f"ds_read_b64_tr_b16 {vr(f + 2, 2)}, v{VA0} offset:{off + (s % 4) * 2304 + 576}")
        a(f"ds_read_b128 {vr(f + 4, 4)}, v{VBX + s % 4} offset:{off}")

    def mm(s):
        f = FR + 8 * (s % 4)
        mfma16(a, ACC, f, f + 4, ACC)
    for g, (i0, i1) in enumerate(GROUPS):
        if g < 2:
            l0, l1 = a.newlabel("qa"), a.newlabel("qb")
            a(f"s_cmp_eq_u32 s{sWAVE}, s{sSUB}")
            a(f"s_cbranch_scc1 {l0}")
            a(f"s_waitcnt vmcnt({[16, 8][g]})")
            a(f"s_branch {l1}")
            a.label(l0)
            a(f"s_waitcnt vmcnt({[12, 10][g]})")
            a.label(l1)
        else:
            a("s_waitcnt vmcnt(0)")
        cnt_add(a, C_RDY + 4 * g)
        if g == 0:
            cnt_wait(a, C_KVFREE, 1)
            stream(a, 7, 2, True)
        cnt_wait(a, C_RDY + 4 * g, 4)
        pipelined(a, (i1 - i0) * 4, rd, mm)
        if g == 0:
            cnt_add(a, C_G0DONE)
        if g < 2:
            a(f"v_add_u32 v{VA0}, {(i1 - i0) * SLOT}, v{VA0}")
            for ks in range(4):
                a(f"v_add_u32 v{VBX + ks}, {(i1 - i0) * SLOT}, v{VBX + ks}")
    cnt_wait(a, C_G0DONE, 6)
    a(f"s_and_b32 s{sT0}, s{sWAVE}, 1")
    a(f"s_lshl_b32 s{sT0}, s{sT0}, 5")
    a(f"v_and_b32 v{T1}, 31, v{LANE}")
    a(f"v_add_u32 v{T1}, s{sT0}, v{T1}")
    a(f"v_mul_u32_u24 v{T1}, {QPITCH}, v{T1}")
    a(f"v_lshrrev_b32 v{T0}, 5, v{LANE}")
    a(f"v_lshl_add_u32 v{T1}, v{T0}, 3, v{T1}")
    a(f"s_lshr_b32 s{sT0}, s{sWAVE}, 1")
    a(f"s_lshl_b32 s{sT0}, s{sT0}, 6")
    a(f"s_add_u32 s{sT0}, s{sT0}, {L_QS}")
    a(f"v_add_u32 v{T1}, s{sT0}, v{T1}")
    a(f"s_mov_b32 s{sT0}, {QSCALE}")
    for j in range(16):
        a(f"v_mul_f32 v{ACC + j}, s{sT0}, v{ACC + j}")
    for i in range(8):
        a(f"v_cvt_pk_bf16_f32 v{PKD + i}, v{ACC + 2 * i}, v{ACC + 2 * i + 1}")
    for g in range(4):
        a(f"ds_write_b64 v{T1}, {vr(PKD + 2 * g, 2)} offset:{16 * g}")
    a("s_waitcnt lgkmcnt(0)")


def q_t2(a):
    afrag16_addr(a, VA0, 8192)
    a(f"s_sub_u32 s{sT0}, s{sWAVE}, 6")
    a(f"s_lshl_b32 s{sT0}, s{sT0}, 5")
    a(f"v_and_b32 v{T1}, 15, v{LANE}")
    a(f"v_add_u32 v{T1}, s{sT0}, v{T1}")
    a(f"v_bfe_u32 v{T2}, v{T1}, 1, 3")
    a(f"v_xor_b32 v{T2}, v{T2}, v{T0}")
    a(f"v_lshlrev_b32 v{T4}, 7, v{T1}")
    for h2 in range(2):
        a(f"v_xor_b32 v{T3}, {4 * h2}, v{T2}")
        a(f"v_lshl_add_u32 v{VBX + h2}, v{T3}, 4, v{T4}")
    a(f"v_mul_u32_u24 v{VBX + 2}, {QPITCH}, v{T1}")
    a(f"v_lshl_add_u32 v{VBX + 2}, v{T0}, 3, v{VBX + 2}")
    a(f"v_add_u32 v{VBX + 2}, {L_QS + 128}, v{VBX + 2}")
    for j in range(8):
        a(f"v_mov_b32 v{ACC + j}, 0")
    F = 104

    def rd(s):
        f = F + 12 * (s % 3)
        off = (s // 2) * SLOT
        a(f"ds_read_b64_tr_b16 {vr(f, 2)}, v{VA0} offset:{off + (s % 2) * 4608}")
        a(f"ds_read_b64_tr_b16 {vr(f + 2, 2)}, v{VA0} offset:{off + (s % 2) * 4608 + 576}")
        a(f"ds_read_b128 {vr(f + 4, 4)}, v{VBX + s % 2} offset:{off}")
        a(f"ds_read_b128 {vr(f + 8, 4)}, v{VBX + s % 2} offset:{off + 2048}")

    def mm(s):
        f = F + 12 * (s % 3)
        for u in range(2):
            mfma1616(a, ACC + 4 * u, f, f + 4 + 4 * u)
    cnt_wait(a, C_KVFREE, 1)
    for g, (i0, i1) in enumerate(GROUPS):
        cnt_wait(a, C_RDY + 4 * g, 4)
        pipelined(a, (i1 - i0) * 2, rd, mm, per=4, depth=2)
        if g == 0:
            cnt_add(a, C_G0DONE)
        if g < 2:
            a(f"v_add_u32 v{VA0}, {(i1 - i0) * SLOT}, v{VA0}")
            for h2 in range(2):
                a(f"v_add_u32 v{VBX + h2}, {(i1 - i0) * SLOT}, v{VBX + h2}")
    cnt_wait(a, C_G0DONE, 6)
    a(f"s_mov_b32 s{sT0}, {QSCALE}")
    for j in range(8):
        a(f"v_mul_f32 v{ACC + j}, s{sT0}, v{ACC + j}")
    for i in range(4):
        a(f"v_cvt_pk_bf16_f32 v{PKD + i}, v{ACC + 2 * i}, v{ACC + 2 * i + 1}")
    a("s_mov_b32 exec_hi, 0")
    a(f"ds_write_b64 v{VBX + 2}, {vr(PKD, 2)}")
    a(f"ds_write_b64 v{VBX + 2}, {vr(PKD + 2, 2)} offset:{16 * QPITCH}")
    a("s_mov_b32 exec_hi, -1")
    a("s_waitcnt lgkmcnt(0)")


def team_issue(a):
    a(f"s_sub_u32 s{sT2}, s{sWAVE}, 5")
    a(f"s_mul_i32 s{sT2}, s{sT2}, 3")
    set_chunk(a, idx_reg=sT2)
    a(f"s_lshl_b32 s{sT0}, s{sPB}, 2")
    a(f"s_add_u32 s{sT0}, s{sT0}, s{sSUB}")
    a(f"s_mul_i32 s{sT4}, s{sT0}, {16 * D * 2}")
    a(f"s_lshl_b32 s{sLD}, s{sT2}, 12")
    a(f"s_add_u32 s{sLD}, s{sLD}, {L_WKV}")
    a(f"s_mov_b32 s{sT3}, s{sLD}")
    a(f"v_lshlrev_b32 v{T0}, 1, v{LANE}")
    for i in range(3):
        a(f"s_add_u32 s{sN}, s{sT2}, {i}")
        a(f"s_mul_i32 s{sT0}, s{sN}, {SLOT}")
        a(f"s_lshl_b32 s{sT1}, s{sSUB}, 11")
        a(f"s_add_u32 s{sT0}, s{sT0}, s{sT1}")
        a(f"s_lshl_b32 s{sT1}, s{sN}, 11")
        a(f"s_add_u32 s{sT1}, s{sT1}, {L_XK78 - 7 * 2048}")
        a(f"s_cmp_lt_u32 s{sN}, 7")
        a(f"s_cselect_b32 s{sXB + i}, s{sT0}, s{sT1}")
        a(f"s_lshl_b32 s{sT1}, s{sCK}, 7")
        a(f"buffer_load_ushort v{GW + i}, v{T0}, {sr(SRD_GW, 4)}, s{sT1} offen")
        a(f"s_add_u32 s{sT1}, s{sT1}, s{sT4}")
        dma(a, VDX0, SRD_X, sT1, sXB + i)
        dma(a, VDX1, SRD_X, sT1, sXB + i, 1024)
        a(f"s_mul_i32 s{sT1}, s{sCK}, {64 * 36}")
        a("s_mov_b32 exec_lo, 0x77777777")
        a("s_mov_b32 exec_hi, 0x77777777")
        for p in range(4):
            dma(a, VDK, SRD_KVW, sT1, sLD)
            a(f"s_add_u32 s{sLD}, s{sLD}, 1024")
            a(f"s_add_u32 s{sT1}, s{sT1}, {16 * 36}")
        a("s_mov_b64 exec, -1")
        next_chunk(a)


def team_compute(a):
    a(f"v_lshrrev_b32 v{T0}, 4, v{LANE}")
    a(f"v_bfe_u32 v{T2}, v{LANE}, 2, 2")
    a(f"v_and_b32 v{T3}, 3, v{LANE}")
    a(f"v_lshl_add_u32 v{T1}, v{T0}, 3, v{T2}")
    a(f"v_lshlrev_b32 v{T1}, 6, v{T1}")
    a(f"v_lshl_add_u32 v{VA0}, v{T3}, 3, v{T1}")
    a(f"v_add_u32 v{VA0}, s{sT3}, v{VA0}")
    a(f"v_and_b32 v{T1}, 15, v{LANE}")
    a(f"v_lshrrev_b32 v{T2}, 1, v{T1}")
    a(f"v_xor_b32 v{T2}, v{T2}, v{T0}")
    a(f"v_lshlrev_b32 v{T4}, 7, v{T1}")
    a(f"v_lshl_add_u32 v{VXB}, v{T2}, 4, v{T4}")
    XA = PKD
    for i in range(3):
        a(f"v_add_u32 v{XA + 2 * i}, s{sXB + i}, v{VXB}")
        a(f"v_xor_b32 v{XA + 2 * i + 1}, 64, v{XA + 2 * i}")
    for j in range(8):
        a(f"v_mov_b32 v{ACC + j}, 0")
    a(f"v_lshlrev_b32 v{T0}, 6, v{LANE}")
    a(f"v_add_u32 v{T0}, s{sT3}, v{T0}")
    a("s_waitcnt vmcnt(0)")
    stamp(a, 2)
    for i in range(3):
        a(f"ds_write_b16 v{T0}, v{GW + i} offset:{4096 * i + 48}")
    F = XR
    for s in range(6):
        f = F + 12 * s
        a(f"ds_read_b128 {vr(f, 4)}, v{XA + s}")
        for nt in range(2):
            a(f"ds_read_b64_tr_b16 {vr(f + 4 + 4 * nt, 2)}, v{VA0} offset:{s * 2048 + 32 * nt}")
            a(f"ds_read_b64_tr_b16 {vr(f + 6 + 4 * nt, 2)}, v{VA0} offset:{s * 2048 + 32 * nt + 256}")
        if s in (1, 3):
            a("s_waitcnt lgkmcnt(5)")
    for kind in range(2):
        a.label(f"L_kv_{kind}")
        if kind == 0:
            a(f"s_cmp_ge_u32 s{sHQ}, 4")
            a("s_cbranch_scc1 L_kv_1")
        for s in range(6):
            f = F + 12 * s
            if s >= 3:
                a(f"s_waitcnt lgkmcnt({5 * (5 - s)})")
            for nt in range(2):
                w = f + 4 + 4 * nt
                pa, pb = (w, f) if kind == 0 else (f, w)
                mfma1616(a, ACC + 4 * nt, pa, pb)
        if kind == 0:
            a("s_branch L_kv_j")
    a.label("L_kv_j")
    a(f"v_add_u32 v{T0}, s{sT3}, v{L16}")
    a("s_nop 6")
    a(f"s_cmp_eq_u32 s{sWAVE}, 5")
    a("s_cbranch_scc1 L_kv_fin")
    a(f"ds_write_b128 v{T0}, {vr(ACC, 4)}")
    a(f"ds_write_b128 v{T0}, {vr(ACC + 4, 4)} offset:1024")
    a("s_waitcnt lgkmcnt(0)")
    cnt_add(a, C_TEAM)
    a("s_setprio 0")
    a("s_branch L_q_t2")
    a.label("L_kv_fin")
    a(f"s_lshl_b32 s{sT3}, s{sPB}, 1")
    a(f"s_lshr_b32 s{sT0}, s{sSUB}, 1")
    a(f"s_add_u32 s{sT3}, s{sT3}, s{sT0}")
    a(f"s_lshr_b32 s{sT1}, s{sT3}, 3")
    a(f"s_mul_i32 s{sT1}, s{sT1}, {STAGE}")
    a(f"s_add_u32 s{sT1}, s{sT1}, {WS_KV}")
    a(f"s_and_b32 s{sT0}, s{sT3}, 7")
    a(f"s_and_b32 s{sT4}, s{sSUB}, 1")
    cnt_wait(a, C_TEAM, 2)
    for j in range(2):
        for nt in range(2):
            a(f"ds_read_b128 {vr(FR + 8 * j + 4 * nt, 4)}, v{T0} offset:{12288 * (j + 1) + 1024 * nt}")
    a(f"v_and_b32 v{T0}, 15, v{LANE}")
    a(f"v_bfe_u32 v{T1}, v{LANE}, 4, 1")
    a(f"v_lshrrev_b32 v{T2}, 5, v{LANE}")
    a("s_waitcnt lgkmcnt(0)")
    cnt_add(a, C_KVFREE)
    for j in range(8):
        a(f"v_add_f32 v{ACC + j}, v{ACC + j}, v{FR + j}")
    for j in range(8):
        a(f"v_add_f32 v{ACC + j}, v{ACC + j}, v{FR + 8 + j}")
    for i in range(4):
        a(f"v_cvt_pk_bf16_f32 v{PKD + i}, v{ACC + 2 * i}, v{ACC + 2 * i + 1}")
    a(f"s_cmp_ge_u32 s{sHQ}, 4")
    a("s_cbranch_scc1 L_st_v")
    a(f"v_lshlrev_b32 v{T3}, 4, v{T0}")
    a(f"v_lshl_add_u32 v{T3}, v{T2}, 9, v{T3}")
    a(f"v_lshl_add_u32 v{T3}, v{T1}, 3, v{T3}")
    a(f"s_lshl_b32 s{sT2}, s{sT0}, 10")
    a(f"s_add_u32 s{sT2}, s{sT2}, s{sT1}")
    a(f"s_lshl_b32 s{sN}, s{sT4}, 8")
    a(f"s_add_u32 s{sT2}, s{sT2}, s{sN}")
    a(f"buffer_store_dwordx2 {vr(PKD, 2)}, v{T3}, {sr(SRD_WS, 4)}, s{sT2} offen sc1")
    a(f"s_lshr_b32 s{sT2}, s{sT0}, 1")
    a(f"s_lshl_b32 s{sT2}, s{sT2}, 8")
    a(f"s_and_b32 s{sT0}, s{sT0}, 1")
    a(f"s_lshl_b32 s{sT0}, s{sT0}, 2")
    a(f"s_add_u32 s{sT2}, s{sT2}, s{sT0}")
    a(f"s_add_u32 s{sT2}, s{sT2}, s{sT1}")
    a(f"s_lshl_b32 s{sN}, s{sT4}, 7")
    a(f"s_add_u32 s{sT2}, s{sT2}, s{sN}")
    a(f"s_add_u32 s{sT2}, s{sT2}, {K2_OFF_IN_STAGE}")
    a("s_mov_b32 exec_lo, 0xffff")
    a("s_mov_b32 exec_hi, 0")
    a(f"buffer_store_dword v{PKD + 2}, v{L8}, {sr(SRD_WS, 4)}, s{sT2} offen sc1")
    a("s_mov_b32 exec_lo, 0")
    a("s_mov_b32 exec_hi, 0xffff")
    a(f"v_lshlrev_b32 v{T3}, 16, v{PKD + 2}")
    a(f"v_mul_f32 v{T3}, {f32bits(-math.log2(math.e))}, v{T3}")
    a(f"v_exp_f32 v{T3}, v{T3}")
    a("s_nop 0")
    a(f"v_add_f32 v{T3}, 1.0, v{T3}")
    a(f"v_rcp_f32 v{T3}, v{T3}")
    a("s_nop 0")
    a(f"v_cvt_pk_bf16_f32 v{T3}, v{T3}, v{T3}")
    a(f"v_and_b32 v{T3}, 0xffff0000, v{T3}")
    a(f"v_lshlrev_b32 v{T4}, 2, v{T0}")
    a(f"s_lshl_b32 s{sT2}, s{sT3}, 7")
    a(f"s_lshl_b32 s{sN}, s{sT4}, 6")
    a(f"s_add_u32 s{sT2}, s{sT2}, s{sN}")
    a(f"s_add_u32 s{sT2}, s{sT2}, {WS_G}")
    a(f"buffer_store_dword v{T3}, v{T4}, {sr(SRD_WS, 4)}, s{sT2} offen sc1")
    a("s_mov_b64 exec, -1")
    a("s_branch L_kv_pub")
    a.label("L_st_v")
    a(f"v_cmp_eq_u32 vcc, 2, v{T0}")
    a(f"v_mov_b32 v{T3}, 0x3f803f80")
    a("s_nop 0")
    for i in range(2):
        a(f"v_cndmask_b32 v{PKD + 2 + i}, v{PKD + 2 + i}, v{T3}, vcc")
    a(f"v_cmp_eq_u32 vcc, 3, v{T0}")
    a("s_nop 1")
    for i in range(2):
        a(f"v_cndmask_b32 v{PKD + 2 + i}, v{PKD + 2 + i}, 0, vcc")
    a(f"v_mul_u32_u24 v{T1}, 320, v{T1}")
    a(f"v_lshl_add_u32 v{T1}, v{T0}, 4, v{T1}")
    a(f"v_lshl_add_u32 v{T1}, v{T2}, 3, v{T1}")
    a(f"s_lshl_b32 s{sT0}, s{sT0}, 1")
    a(f"s_add_u32 s{sT0}, s{sT0}, s{sT4}")
    a(f"s_mul_i32 s{sT0}, s{sT0}, {VGRP}")
    a(f"s_add_u32 s{sT0}, s{sT0}, s{sT1}")
    a(f"s_add_u32 s{sT0}, s{sT0}, {V_OFF_IN_STAGE}")
    a(f"buffer_store_dwordx2 {vr(PKD, 2)}, v{T1}, {sr(SRD_WS, 4)}, s{sT0} offen sc1")
    a("s_mov_b32 exec_lo, 0x000f000f")
    a("s_mov_b32 exec_hi, 0x000f000f")
    a(f"buffer_store_dwordx2 {vr(PKD + 2, 2)}, v{T1}, {sr(SRD_WS, 4)}, s{sT0} offen offset:256 sc1")
    a("s_mov_b64 exec, -1")
    a.label("L_kv_pub")
    get_tag(a)
    a(f"s_lshl_b32 s{sT3}, s{sPB}, 3")
    a(f"s_add_u32 s{sT3}, s{sT3}, s{sHQ}")
    a(f"s_lshl_b32 s{sT3}, s{sT3}, 4")
    a(f"s_add_u32 s{sT3}, s{sT3}, {WS_FLAG}")
    a("s_waitcnt vmcnt(0)")
    put_flag(a, sT3)
    stamp(a, 3)
    a("s_setprio 0")


def set_bases(a):
    a(f"v_add_u32 v{VK}, s{sCUR}, v{L16}")
    a(f"v_add_u32 v{VK2}, s{sCUR}, v{L8}")
    a(f"v_add_u32 v{VV}, s{sCUR}, v{VSL}")
    a(f"v_add_u32 v{VKN}, s{sNXT}, v{L16}")
    a(f"v_add_u32 v{VK2N}, s{sNXT}, v{L8}")
    a(f"v_add_u32 v{VVN}, s{sNXT}, v{VSL}")


def rd_k1(a, tile):
    if tile < 8:
        a(f"ds_read_b128 {vr(K1F, 4)}, v{VK} offset:{tile * 1024}")
    else:
        a(f"ds_read_b128 {vr(K1F, 4)}, v{VKN} offset:{(tile - 8) * 1024}")


def rd_k2(a, beta, nxt):
    a(f"ds_read_b64 {vr(K2F + 2 * beta, 2)}, v{VK2N if nxt else VK2} offset:{K2_OFF_IN_STAGE + beta * 512}")


def rd_v(a, tile, g):
    dst = VA if g == 0 else VB
    if tile < 8:
        a(f"ds_read_b128 {vr(dst, 4)}, v{VV} offset:{V_OFF_IN_STAGE + (tile * 2 + g) * VGRP}")
    else:
        a(f"ds_read_b128 {vr(dst, 4)}, v{VVN} offset:{V_OFF_IN_STAGE + ((tile - 8) * 2 + g) * VGRP}")


def tile_max(a, s, acc):
    a(f"v_max3_f32 v{acc}, v{s}, v{s + 1}, v{s + 2}")
    a(f"v_max_f32 v{acc}, v{acc}, v{s + 3}")
    for j in range(4, 16, 2):
        a(f"v_max3_f32 v{acc}, v{acc}, v{s + j}, v{s + j + 1}")


def cross_half_max(a, x, tmp):
    a(f"v_mov_b32 v{tmp}, v{x}")
    a("s_nop 1")
    a(f"v_permlane32_swap_b32 v{x}, v{tmp}")
    a("s_nop 1")
    a(f"v_max_f32 v{x}, v{x}, v{tmp}")


def dma_slot(a):
    lab = a.newlabel("ds")
    a(f"s_cmp_eq_u32 s{sREM}, 0")
    a(f"s_cbranch_scc1 {lab}")
    a(f"s_mov_b32 m0, s{sL}")
    a(f"s_sub_u32 s{sREM}, s{sREM}, 1")
    a(f"buffer_load_dwordx4 v{VDMA}, {sr(SRD_DMA, 4)}, s{sG} offen sc1 lds")
    a(f"s_add_u32 s{sL}, s{sL}, s{sLSTEP}")
    a(f"s_add_u32 s{sG}, s{sG}, s{sGSTEP}")
    a.label(lab)


SITE_A, SITE_B = 4, 10


def halfstep(a, h):
    t, r = divmod(h, 2)
    tn, rn = divmod(h + 1, 2)
    rp = (h - 1) % 2
    S, Sn = SB[h % 2], SB[(h + 1) % 2]
    first, last = r == 0, r == 1
    if h == SITE_A:
        a(f"s_bitcmp1_b32 {9 if BRANCH_B else 8}, s{sSTAGE}")
        a("s_cbranch_scc1 L_siteA")
        a.label("L_siteA_back")
    if h == SITE_B:
        a(f"s_cmp_lt_u32 s{sSTAGE}, {3 if BRANCH_B else 2}")
        a("s_cbranch_scc1 L_siteB")
        a.label("L_siteB_back")
    if PRIOG and h % PRIOG == 0:
        a(f"s_setprio {3 - (h // PRIOG) % 4}")
    cnt = None
    for tok in ORDER.split():
        n0 = len(a.lines)
        if tok[0] == "e":
            j = int(tok[1:])
            a(f"v_exp_f32 v{S + j}, v{S + j}")
        elif tok[0] == "c":
            j = int(tok[1:])
            a(f"v_cvt_pk_bf16_f32 v{P + j}, v{S + 2 * j}, v{S + 2 * j + 1}")
        elif tok == "PVb":
            if rp == 0:
                a("s_waitcnt lgkmcnt(1)")
            mfma16(a, O[rp], VB, P + 4, O[rp])
            if first:
                rd_v(a, t, 1)
        elif tok == "M1":
            if rn == 0:
                a("s_waitcnt lgkmcnt(0)")
            mfma16(a, Sn, K1F, Q1[rn], NEGM[rn])
            if rn == 1:
                rd_k1(a, tn + 1)
                if tn + 1 == 7:
                    rd_k2(a, 0, True)
                if tn + 1 == 1:
                    rd_k2(a, 1, False)
            dma_slot(a)
        elif tok == "M2":
            tq = tn % 8
            mfma8(a, Sn, K2F + 2 * (tq // 4), QV[rn] + 2 * (tq % 4), Sn)
            cnt = 0
            continue
        elif tok == "PVa":
            if first:
                a("s_waitcnt lgkmcnt(2)")
            mfma16(a, O[r], VA, P, O[r])
            if last:
                rd_v(a, t + 1, 0)
        if cnt is not None:
            cnt += len(a.lines) - n0
    if cnt < 12:
        a(f"s_nop {12 - cnt - 1}")


def fallback(a):
    a.comment("fallback: online softmax with the running row max, K/V read from the workspace image")
    M = [T2, T3]
    for r in range(2):
        a(f"v_mov_b32 v{M[r]}, 0xff7fffff")
        for j in range(16):
            a(f"v_mov_b32 v{O[r] + j}, 0")
    a(f"v_and_b32 v{VK2}, 31, v{LANE}")
    a(f"v_lshlrev_b32 v{VK2}, 3, v{VK2}")
    a(f"v_mov_b32 v{K2F + 1}, 0")
    a(f"s_mov_b32 s{sI}, 0")
    a.label("L_fb_loop")
    a(f"s_lshr_b32 s{sT0}, s{sI}, 3")
    a(f"s_lshl_b32 s{sT0}, s{sT0}, 1")
    a(f"s_add_u32 s{sT0}, s{sT0}, s{sKH}")
    a(f"s_mul_i32 s{sT0}, s{sT0}, {STAGE}")
    a(f"s_add_u32 s{sT0}, s{sT0}, {WS_KV}")
    a(f"s_and_b32 s{sT1}, s{sI}, 7")
    a(f"s_lshl_b32 s{sT2}, s{sT1}, 10")
    a(f"s_add_u32 s{sT2}, s{sT2}, s{sT0}")
    a(f"buffer_load_dwordx4 {vr(K1F, 4)}, v{L16}, {sr(SRD_WS, 4)}, s{sT2} offen sc1")
    a(f"s_lshr_b32 s{sT2}, s{sT1}, 1")
    a(f"s_lshl_b32 s{sT2}, s{sT2}, 8")
    a(f"s_and_b32 s{sT3}, s{sT1}, 1")
    a(f"s_lshl_b32 s{sT3}, s{sT3}, 2")
    a(f"s_add_u32 s{sT2}, s{sT2}, s{sT3}")
    a(f"s_add_u32 s{sT2}, s{sT2}, s{sT0}")
    a(f"s_add_u32 s{sT2}, s{sT2}, {K2_OFF_IN_STAGE}")
    a(f"buffer_load_dword v{K2F}, v{VK2}, {sr(SRD_WS, 4)}, s{sT2} offen sc1")
    a(f"s_mul_i32 s{sT2}, s{sT1}, {2 * VGRP}")
    a(f"s_add_u32 s{sT2}, s{sT2}, s{sT0}")
    a(f"s_add_u32 s{sT2}, s{sT2}, {V_OFF_IN_STAGE}")
    a(f"buffer_load_dwordx4 {vr(VA, 4)}, v{VSL}, {sr(SRD_WS, 4)}, s{sT2} offen sc1")
    a(f"buffer_load_dwordx4 {vr(VB, 4)}, v{VSL}, {sr(SRD_WS, 4)}, s{sT2} offen offset:{VGRP} sc1")
    a("s_waitcnt vmcnt(0)")
    for r in range(2):
        mfma16(a, SB[r], K1F, Q1[r], None)
        mfma8(a, SB[r], K2F, QV[r], SB[r])
    a("s_nop 15")
    for r in range(2):
        S = SB[r]
        tile_max(a, S, T0)
        cross_half_max(a, T0, T1)
        a(f"v_max_f32 v{T0}, v{T0}, v{M[r]}")
        a(f"v_sub_f32 v{T1}, v{M[r]}, v{T0}")
        a(f"v_exp_f32 v{T1}, v{T1}")
        a(f"v_mov_b32 v{M[r]}, v{T0}")
        for j in range(16):
            a(f"v_mul_f32 v{O[r] + j}, v{O[r] + j}, v{T1}")
        for j in range(16):
            a(f"v_sub_f32 v{S + j}, v{S + j}, v{T0}")
        for j in range(16):
            a(f"v_exp_f32 v{S + j}, v{S + j}")
        a("s_nop 0")
        for j in range(8):
            a(f"v_cvt_pk_bf16_f32 v{P + j}, v{S + 2 * j}, v{S + 2 * j + 1}")
        a("s_nop 1")
        mfma16(a, O[r], VA, P, O[r])
        mfma16(a, O[r], VB, P + 4, O[r])
    a("s_nop 15")
    a(f"s_add_u32 s{sI}, s{sI}, 1")
    a(f"s_cmp_lt_u32 s{sI}, 32")
    a("s_cbranch_scc1 L_fb_loop")
    for r in range(2):
        a(f"v_sub_f32 v{NEGM[r]}, 0, v{M[r]}")
        a(f"v_cndmask_b32 v{O[r] + 10}, v{O[r] + 10}, v{O[r] + 14}, {sr(sHALF, 2)}")
    a("s_branch L_attn_ok")


def attention(a):
    for r in range(2):
        q = QV[r]
        a(f"v_mov_b32 v{T4}, v{q + 1}")
        for j in (1, 2, 5, 6):
            a(f"v_mov_b32 v{q + j}, 0")
        a(f"v_cndmask_b32 v{q + 0}, v{T4}, 0, {sr(sHALF, 2)}")
        a(f"v_cndmask_b32 v{q + 3}, v{T4}, 0, {sr(sHALF, 2)}")
        a(f"v_cndmask_b32 v{q + 4}, 0, v{T4}, {sr(sHALF, 2)}")
        a(f"v_cndmask_b32 v{q + 7}, 0, v{T4}, {sr(sHALF, 2)}")
        for j in range(16):
            a(f"v_mov_b32 v{O[r] + j}, 0")
    for j in range(4):
        a(f"v_mov_b32 v{P + 4 + j}, 0")
        a(f"v_mov_b32 v{VB + j}, 0")
    a(f"s_mov_b32 s{sSTAGE}, 0")
    a(f"s_mul_i32 s{sCUR}, s{sKH}, {STAGE}")
    a(f"s_add_u32 s{sNXT}, s{sCUR}, {PAIR}")
    set_bases(a)
    a("s_waitcnt vmcnt(0)")
    a("s_barrier")
    stamp(a, 1)
    if BRANCH_B:
        lab = a.newlabel("nkp")
        a(f"s_cmp_lt_u32 s{sWAVE}, 5")
        a(f"s_cbranch_scc1 {lab}")
        kvprep_loads(a)
        a.label(lab)
    rd_k1(a, 0)
    rd_k2(a, 0, False)
    rd_k2(a, 1, False)
    rd_v(a, 0, 0)
    a("s_waitcnt lgkmcnt(2)")
    for r in range(2):
        mfma16(a, SB[r], K1F, Q1[r], None)
        mfma8(a, SB[r], K2F, QV[r], SB[r])
    a("s_nop 9")
    for r in range(2):
        tile_max(a, SB[r], T0 + 2 * r)
    for r in range(2):
        a(f"v_mov_b32 v{T1 + 2 * r}, v{T0 + 2 * r}")
    a("s_nop 0")
    for r in range(2):
        a(f"v_permlane32_swap_b32 v{T0 + 2 * r}, v{T1 + 2 * r}")
    a("s_nop 0")
    for r in range(2):
        a(f"v_max_f32 v{T0 + 2 * r}, v{T0 + 2 * r}, v{T1 + 2 * r}")
    for r in range(2):
        for j in range(16):
            a(f"v_sub_f32 v{NEGM[r] + j}, 0, v{T0 + 2 * r}")
    for j in range(16):
        a(f"v_sub_f32 v{SB[0] + j}, v{SB[0] + j}, v{T0}")
    a.lines.append(".p2align 3")
    a.label("L_attn_loop")
    for h in range(16):
        halfstep(a, h)
    a(f"s_add_u32 s{sSTAGE}, s{sSTAGE}, 1")
    a(f"s_mov_b32 s{sCUR}, s{sNXT}")
    a(f"s_add_u32 s{sNXT}, s{sNXT}, {PAIR}")
    a(f"s_cmp_ge_u32 s{sNXT}, {KV_BYTES}")
    a(f"s_cselect_b32 s{sNXT}, s{sCUR}, s{sNXT}")
    set_bases(a)
    a(f"s_bitcmp1_b32 {12 if BRANCH_B else 8}, s{sSTAGE}")
    a("s_cbranch_scc1 L_enter3")
    a.label("L_enter3_back")
    a(f"s_cmp_lt_u32 s{sSTAGE}, 4")
    a("s_cbranch_scc1 L_attn_loop")
    a("s_setprio 0")
    a("s_waitcnt lgkmcnt(0)")
    mfma16(a, O[1], VB, P + 4, O[1])
    a(f"s_mov_b32 s{sT0}, 0x4e800000")
    a("s_nop 12")
    for r in range(2):
        a(f"v_cndmask_b32 v{O[r] + 10}, v{O[r] + 10}, v{O[r] + 14}, {sr(sHALF, 2)}")
    a(f"v_add_f32 v{T0}, v{O[0] + 10}, v{O[1] + 10}")
    a(f"v_cmp_ngt_f32 vcc, s{sT0}, v{T0}")
    a("s_nop 4")
    a("s_cbranch_vccnz L_fallback")
    a.label("L_attn_ok")


def out_of_line(a):
    a.label("L_enter3")
    a("s_waitcnt lgkmcnt(0)")
    if BRANCH_B:
        l3, lr, lx = a.newlabel("e3"), a.newlabel("er"), a.newlabel("ex")
        a(f"s_cmp_eq_u32 s{sSTAGE}, 3")
        a(f"s_cbranch_scc1 {l3}")
        cnt_add(a, C_S2)
        a.label(l3)
        a(f"s_add_u32 s{sT0}, s{sKH}, 2")
        a(f"s_cmp_lg_u32 s{sT0}, s{sSTAGE}")
        a(f"s_cbranch_scc1 {lx}")
        conv_run(a)
        a.label(lx)
        a(f"s_cmp_lg_u32 s{sSTAGE}, 3")
        a(f"s_cbranch_scc1 {lr}")
        cnt_add(a, C_S3)
        a.label(lr)
    else:
        cnt_add(a, C_S3)
    a("s_waitcnt lgkmcnt(0)")
    a("s_branch L_enter3_back")
    a.label("L_siteB")
    l0, l2, lp = a.newlabel("sb1"), a.newlabel("sb2"), a.newlabel("sbp")
    a(f"s_cmp_eq_u32 s{sSTAGE}, 1")
    a(f"s_cbranch_scc1 {l0}")
    a(f"s_cmp_eq_u32 s{sSTAGE}, 2")
    a(f"s_cbranch_scc1 {l2}")
    a("s_waitcnt vmcnt(5)")
    a("s_barrier")
    if BRANCH_B:
        a(f"s_cmp_lg_u32 s{sWAVE}, 4")
        a("s_cbranch_scc1 L_siteB_back")
        a(f"s_lshl_b32 s{sT1}, s{sHQ}, 5")
        a(f"s_add_u32 s{sT1}, s{sT1}, s{sPB}")
        a(f"s_lshl_b32 s{sT1}, s{sT1}, 4")
        a(f"s_add_u32 s{sT1}, s{sT1}, {WS_UFLAG}")
        put_flag(a, sT1)
    a("s_branch L_siteB_back")
    a.label(l0)
    a("s_waitcnt vmcnt(0)")
    a("s_barrier")
    if BRANCH_B:
        a(f"s_cmp_eq_u32 s{sKH}, 0")
        a(f"s_cbranch_scc1 {lp}")
    a("s_branch L_siteB_back")
    a.label(l2)
    if BRANCH_B:
        a(f"s_cmp_eq_u32 s{sKH}, 0")
        a("s_cbranch_scc1 L_siteB_back")
        cnt_wait(a, C_S2, 8)
        a.label(lp)
        conv_prep(a)
    a("s_branch L_siteB_back")
    a.label("L_siteA")
    if BRANCH_B:
        l3 = a.newlabel("sa3")
        a(f"s_cmp_eq_u32 s{sSTAGE}, 3")
        a(f"s_cbranch_scc1 {l3}")
        a(f"s_cmp_lt_u32 s{sWAVE}, 5")
        a("s_cbranch_scc1 L_siteA_back")
        a(f"s_waitcnt vmcnt({SITE_A})")
        kvprep_compute(a)
        a("s_branch L_siteA_back")
        a.label(l3)
    cnt_wait(a, C_S3, 8)
    for i in range(4):
        a(f"s_mov_b32 s{SRD_DMA + i}, s{SRD_WO + i}")
    a(f"v_mov_b32 v{VDMA}, v{VWO}")
    a(f"s_mov_b32 s{sG}, s{sWG}")
    a(f"s_mov_b32 s{sGSTEP}, {4 * 18 * D * 2}")
    a(f"s_lshl_b32 s{sL}, s{sWAVE}, 10")
    a(f"s_mov_b32 s{sLSTEP}, 9216")
    a(f"s_mov_b32 s{sREM}, 8")
    a(f"s_mul_i32 s{sT1}, s{sWAVE}, {4 * 18 * D * 2}")
    a(f"s_add_u32 s{sT1}, s{sT1}, s{sWG}")
    a(f"s_mul_i32 s{sT2}, s{sWAVE}, 9216")
    dma(a, VWOE, SRD_WO, sT1, sT2, 8192)
    dma(a, VWOL, SRD_WO, sWG, sL, 8 * 9216)
    a("s_branch L_siteA_back")
    a.label("L_fallback")
    fallback(a)


KR, VR, SKR = XR, XR + 22, XR + 38
WIN, TAP, UU = XR + 46, XR + 54, XR + 62
VUS = XR + 66
JREG = 9728
J_E, J_O, J_H = 0, 2112, 4224


def kvprep_loads(a):
    srd(a, SRD_J, sBP, sBP + 1, S * D * 2)
    a(f"v_mul_u32_u24 v{T0}, 10923, v{LANE}")
    a(f"v_lshrrev_b32 v{T0}, 16, v{T0}")
    a(f"v_mul_u32_u24 v{T1}, 6, v{T0}")
    a(f"v_sub_u32 v{T1}, v{LANE}, v{T1}")
    a(f"s_sub_u32 s{sT0}, s{sWAVE}, 5")
    a(f"s_mul_i32 s{sT0}, s{sT0}, 24")
    a(f"s_mul_i32 s{sT1}, s{sHQ}, 72")
    a(f"s_add_u32 s{sT0}, s{sT0}, s{sT1}")
    a(f"v_lshl_add_u32 v{T1}, v{T1}, 2, s{sT0}")
    a(f"s_lshl_b32 s{sT1}, s{sPB}, 6")
    a(f"v_lshl_add_u32 v{T0}, v{T0}, 3, s{sT1}")
    a(f"v_mul_u32_u24 v{VUS}, {UP2}, v{T1}")
    a(f"v_lshlrev_b32 v{T2}, 1, v{T0}")
    a(f"v_sub_u32 v{VUS}, v{VUS}, v{T2}")
    a(f"v_add_u32 v{VUS}, {WS_U + 2 * 2040}, v{VUS}")
    a(f"v_mul_u32_u24 v{T2}, {D * 2}, v{T0}")
    a(f"v_lshl_add_u32 v{T2}, v{T1}, 1, v{T2}")
    a(f"v_subrev_u32 v{T3}, {3 * D * 2}, v{T2}")
    a(f"v_add_u32 v{T4}, {4 * D * 2}, v{T2}")
    a(f"v_lshlrev_b32 v{T1}, 3, v{T1}")
    a("s_mov_b32 exec_hi, 0xffff")
    for r in range(11):
        base, rr = (T3, r) if r < 3 else ((T2, r - 3) if r < 7 else (T4, r - 7))
        a(f"buffer_load_dwordx2 {vr(KR + 2 * r, 2)}, v{base}, {sr(SRD_J, 4)}, 0 offen offset:{rr * D * 2}")
    srd(a, SRD_J, sBP + 2, sBP + 3, S * D * 2)
    for r in range(8):
        base, rr = (T2, r) if r < 4 else (T4, r - 4)
        a(f"buffer_load_dwordx2 {vr(VR + 2 * r, 2)}, v{base}, {sr(SRD_J, 4)}, 0 offen offset:{rr * D * 2}")
    srd(a, SRD_J, sBP + 4, sBP + 5, D * 8)
    a(f"buffer_load_dwordx4 {vr(SKR, 4)}, v{T1}, {sr(SRD_J, 4)}, 0 offen")
    a(f"buffer_load_dwordx4 {vr(SKR + 4, 4)}, v{T1}, {sr(SRD_J, 4)}, 0 offen offset:16")
    a("s_mov_b32 exec_hi, -1")


def kvprep_compute(a):
    a("s_mov_b32 exec_hi, 0xffff")
    a(f"s_mov_b32 s{sT3}, 0xffff0000")
    PKO = PL
    for cp in range(2):
        for e in range(2):
            c = 2 * cp + e
            a(f"v_lshlrev_b32 v{TAP + 0 + e}, 16, v{SKR + 2 * c}")
            a(f"v_and_b32 v{TAP + 2 + e}, s{sT3}, v{SKR + 2 * c}")
            a(f"v_lshlrev_b32 v{TAP + 4 + e}, 16, v{SKR + 2 * c + 1}")
            a(f"v_and_b32 v{TAP + 6 + e}, s{sT3}, v{SKR + 2 * c + 1}")

        def unpack(r):
            w = WIN + 2 * (r % 4)
            a(f"v_lshlrev_b32 v{w}, 16, v{KR + 2 * r + cp}")
            a(f"v_and_b32 v{w + 1}, s{sT3}, v{KR + 2 * r + cp}")
        for r in range(3):
            unpack(r)
        for p in range(8):
            unpack(p + 3)
            u = UU + 2 * (p % 2)
            a(f"v_pk_mul_f32 {vr(u, 2)}, {vr(WIN + 2 * ((p + 3) % 4), 2)}, {vr(TAP, 2)}")
            for j in range(1, 4):
                a(f"v_pk_fma_f32 {vr(u, 2)}, {vr(WIN + 2 * ((p + 3 - j) % 4), 2)}, {vr(TAP + 2 * j, 2)}, {vr(u, 2)}")
            a(f"v_lshlrev_b32 v{T1}, 16, v{VR + 2 * p + cp}")
            a(f"v_and_b32 v{T2}, s{sT3}, v{VR + 2 * p + cp}")
            a(f"v_pk_mul_f32 {vr(u, 2)}, {vr(u, 2)}, {vr(T1, 2)}")
            if p % 2 == 1:
                for e in range(2):
                    a(f"v_cvt_pk_bf16_f32 v{PKO + 4 * e + (7 - p) // 2}, v{UU + 2 + e}, v{UU + e}")
        for e in range(2):
            a(f"s_mov_b32 s{sT0}, {(2 * cp + e) * UP2}")
            a(f"buffer_store_dwordx4 {vr(PKO + 4 * e, 4)}, v{VUS}, {sr(SRD_WS, 4)}, s{sT0} offen sc1")
    lab = a.newlabel("nopad")
    a(f"s_cmp_lg_u32 s{sPB}, 0")
    a(f"s_cbranch_scc1 {lab}")
    for i in range(4):
        a(f"v_mov_b32 v{WIN + i}, 0")
    a("s_mov_b64 exec, 0x3f")
    for c in range(4):
        a(f"s_mov_b32 s{sT0}, {c * UP2}")
        a(f"buffer_store_dwordx4 {vr(WIN, 4)}, v{VUS}, {sr(SRD_WS, 4)}, s{sT0} offen offset:16 sc1")
    a.label(lab)
    a("s_mov_b64 exec, -1")


def job_assign(a):
    a(f"s_and_b32 s{sT0}, s{sWAVE}, 1")
    a(f"s_add_u32 s{sJOB}, s{sT0}, 1")
    a(f"s_lshl_b32 s{sT1}, s{sKH}, 8")
    a(f"s_add_u32 s{sCH}, s{sT1}, s2")
    l1, l2 = a.newlabel("ja"), a.newlabel("jb")
    a(f"s_bitcmp0_b32 s{sWAVE}, 1")
    a(f"s_cbranch_scc1 {l2}")
    a("s_cmp_lt_u32 s2, 64")
    a(f"s_cbranch_scc0 {l1}")
    a(f"s_add_u32 s{sCH}, s2, 512")
    a(f"s_cmp_eq_u32 s{sKH}, 0")
    a(f"s_cselect_b32 s{sJOB}, s{sJOB}, 3")
    a(f"s_branch {l2}")
    a.label(l1)
    a(f"s_sub_u32 s{sCH}, s2, 64")
    a(f"s_mul_i32 s{sCH}, s{sCH}, 3")
    a(f"s_lshl_b32 s{sT1}, s{sKH}, 1")
    a(f"s_add_u32 s{sT0}, s{sT0}, s{sT1}")
    a(f"s_add_u32 s{sCH}, s{sCH}, s{sT0}")
    a(f"s_cmp_eq_u32 s{sT0}, 3")
    a(f"s_cselect_b32 s{sJOB}, 3, 0")
    a.label(l2)


CACC, CF, CVA, CVB, CVD = XR, XR + 16, XR + 48, XR + 49, XR + 50


def conv_prep(a):
    lab = a.newlabel("cpn")
    a(f"s_cmp_eq_u32 s{sJOB}, 3")
    a(f"s_cbranch_scc1 {lab}")
    get_tag(a)
    a(f"s_mul_i32 s{sT3}, s{sCH}, 911")
    a(f"s_lshr_b32 s{sT3}, s{sT3}, 16")
    a(f"s_lshl_b32 s{sT3}, s{sT3}, 9")
    a(f"s_add_u32 s{sT3}, s{sT3}, {WS_UFLAG}")
    a(f"v_and_b32 v{T0}, 31, v{LANE}")
    a(f"v_lshlrev_b32 v{T0}, 4, v{T0}")
    poll_flags(a, sT3, T0, 1)
    a(f"s_mul_i32 s{sLD}, s{sWAVE}, {JREG}")
    a(f"s_mul_i32 s{sT1}, s{sCH}, {UP2}")
    a(f"s_add_u32 s{sT1}, s{sT1}, {WS_U}")
    a(f"s_add_u32 s{sT1}, s{sWS}, s{sT1}")
    a(f"s_addc_u32 s{sT2}, s{sWS + 1}, 0")
    srd(a, SRD_J, sT1, sT2, UP2)
    a(f"s_cmp_eq_u32 s{sJOB}, 2")
    a(f"s_cselect_b32 s{sT1}, 0, 2048")
    for cpy in range(2):
        for i in range(3):
            if i == 2:
                a("s_mov_b64 exec, 0xf")
            a(f"s_add_u32 s{sT2}, s{sT1}, {1024 * i + 2 * cpy}")
            dma(a, L16, SRD_J, sT2, sLD, cpy * J_O + 1024 * i + (0 if cpy or i else 0), sc1=True)
            if i == 2:
                a("s_mov_b64 exec, -1")
    a(f"s_lshl_b32 s{sT1}, s{sCH}, 12")
    a(f"s_add_u32 s{sT1}, s{sBP + 6}, s{sT1}")
    a(f"s_addc_u32 s{sT2}, s{sBP + 7}, 0")
    srd(a, SRD_J, sT1, sT2, 4096)
    a(f"s_cmp_eq_u32 s{sJOB}, 1")
    a(f"s_cselect_b32 s{sT1}, 0, {(-2048) & 0xffffffff}")
    a(f"s_mov_b32 s{sT2}, 0")
    for i in range(5):
        a(f"v_add_u32 v{T0}, {64 * i}, v{LANE}")
        a(f"v_mul_u32_u24 v{T1}, 13108, v{T0}")
        a(f"v_lshrrev_b32 v{T1}, 16, v{T1}")
        a(f"v_sub_u32 v{T0}, v{T0}, v{T1}")
        a(f"v_lshl_add_u32 v{T0}, v{T0}, 4, s{sT1}")
        dma(a, T0, SRD_J, sT2, sLD, J_H + 1024 * i)
    srd(a, SRD_J, sDP, sDP + 1, D * 2)
    a(f"s_lshl_b32 s{sT1}, s{sCH}, 1")
    a(f"v_mov_b32 v{T0}, 0")
    a(f"buffer_load_ushort v{CVD}, v{T0}, {sr(SRD_J, 4)}, s{sT1} offen")
    a.label(lab)


def conv_run(a):
    end = a.newlabel("crn")
    a(f"s_cmp_eq_u32 s{sJOB}, 3")
    a(f"s_cbranch_scc1 {end}")
    a(f"s_mul_i32 s{sLD}, s{sWAVE}, {JREG}")
    a(f"v_and_b32 v{T0}, 31, v{LANE}")
    a(f"v_lshrrev_b32 v{T1}, 5, v{LANE}")
    a(f"v_or_b32 v{T2}, 1, v{T0}")
    a(f"v_lshlrev_b32 v{T2}, 1, v{T2}")
    a(f"v_lshl_add_u32 v{T2}, v{T1}, 4, v{T2}")
    a(f"s_add_u32 s{sT0}, s{sLD}, {2 * 1047 - 32 * 15}")
    a(f"v_sub_u32 v{CVA}, s{sT0}, v{T2}")
    a(f"v_and_b32 v{T2}, 1, v{T0}")
    a(f"v_xor_b32 v{T2}, 1, v{T2}")
    a(f"v_mul_u32_u24 v{T2}, {J_O}, v{T2}")
    a(f"v_add_u32 v{CVA}, v{CVA}, v{T2}")
    a(f"v_mul_u32_u24 v{T2}, 80, v{T0}")
    a(f"v_lshlrev_b32 v{T3}, 4, v{T1}")
    a(f"v_sub_u32 v{T2}, v{T2}, v{T3}")
    a(f"s_add_u32 s{sT0}, s{sLD}, {J_H + (32 - 7) * 80 + 16}")
    a(f"v_add_u32 v{CVB}, s{sT0}, v{T2}")
    for j in range(16):
        a(f"v_mov_b32 v{CACC + j}, 0")
    a(f"s_mov_b32 s{sN}, 0")
    a("s_waitcnt vmcnt(0) lgkmcnt(0)")
    loop = a.newlabel("cl")
    a.label(loop)

    def rd(s):
        f = CF + 8 * (s % 4)
        o = (15 - s) * 8
        a(f"ds_read2_b32 {vr(f, 2)}, v{CVA} offset0:{o} offset1:{o + 1}")
        a(f"ds_read2_b32 {vr(f + 2, 2)}, v{CVA} offset0:{o + 2} offset1:{o + 3}")
        a(f"ds_read_b128 {vr(f + 4, 4)}, v{CVB} offset:{(7 - s // 2) * 80 + 32 * (1 - (s & 1))}")

    def mm(s):
        f = CF + 8 * (s % 4)
        mfma16(a, CACC, f, f + 4, CACC)
    pipelined(a, 16, rd, mm)
    a(f"v_subrev_u32 v{CVA}, 512, v{CVA}")
    a(f"v_subrev_u32 v{CVB}, 640, v{CVB}")
    a(f"s_add_u32 s{sN}, s{sN}, 1")
    a(f"s_cmp_lt_u32 s{sN}, 4")
    a(f"s_cbranch_scc1 {loop}")
    a(f"s_lshr_b32 s{sT0}, s{sWAVE}, 1")
    a(f"s_lshl_b32 s{sT0}, s{sT0}, 2")
    a(f"v_add_u32 v{VCNT}, s{sT0}, v{VCNT}")
    a(f"s_and_b32 s{sT1}, s{sWAVE}, 6")
    a(f"s_mul_i32 s{sT1}, s{sT1}, {JREG}")
    a(f"v_add_u32 v{T2}, s{sT1}, v{L16}")
    a("s_nop 3")
    fin, j0 = a.newlabel("cf"), a.newlabel("cj0")
    a(f"s_cmp_lg_u32 s{sJOB}, 1")
    a(f"s_cbranch_scc1 {fin}")
    for i in range(4):
        a(f"ds_write_b128 v{T2}, {vr(CACC + 4 * i, 4)} offset:{1024 * i}")
    a("s_waitcnt lgkmcnt(0)")
    cnt_add(a, C_RED)
    a(f"v_mov_b32 v{VCNT}, {L_CNT}")
    a("s_waitcnt lgkmcnt(0)")
    a(f"s_branch {end}")
    a.label(fin)
    a(f"s_cmp_eq_u32 s{sJOB}, 0")
    a(f"s_cbranch_scc1 {j0}")
    cnt_wait(a, C_RED, 1)
    for i in range(4):
        a(f"ds_read_b128 {vr(CF + 4 * i, 4)}, v{T2} offset:{1024 * i}")
    a("s_waitcnt lgkmcnt(0)")
    for j in range(16):
        a(f"v_add_f32 v{CACC + j}, v{CACC + j}, v{CF + j}")
    a.label(j0)
    a(f"v_mov_b32 v{VCNT}, {L_CNT}")
    a(f"v_lshlrev_b32 v{T2}, 6, v{T0}")
    a(f"v_lshl_add_u32 v{T2}, v{T1}, 3, v{T2}")
    a(f"s_add_u32 s{sT0}, s{sLD}, {2 * 1020 - 48}")
    a(f"v_sub_u32 v{T3}, s{sT0}, v{T2}")
    for g in range(4):
        a(f"ds_read_b64 {vr(CF + 2 * g, 2)}, v{T3} offset:{48 - 16 * g}")
    a(f"s_lshl_b32 s{sT0}, s{sCH}, 12")
    a(f"s_lshl_b32 s{sT1}, s{sJOB}, 10")
    a(f"s_add_u32 s{sT0}, s{sT0}, s{sT1}")
    a(f"s_add_u32 s{sT0}, s{sT0}, {WS_ZT}")
    a(f"v_lshlrev_b32 v{CVD}, 16, v{CVD}")
    a(f"s_mov_b32 s{sT3}, 0xffff0000")
    a("s_waitcnt lgkmcnt(0)")
    W = CF + 8
    for g in range(4):
        u = CF + 2 * g
        a(f"v_and_b32 v{W}, s{sT3}, v{u + 1}")
        a(f"v_lshlrev_b32 v{W + 1}, 16, v{u + 1}")
        a(f"v_and_b32 v{W + 2}, s{sT3}, v{u}")
        a(f"v_lshlrev_b32 v{W + 3}, 16, v{u}")
        for e in range(4):
            a(f"v_fmac_f32 v{CACC + 4 * g + e}, v{W + e}, v{CVD}")
        a(f"v_cvt_pk_bf16_f32 v{u}, v{CACC + 4 * g}, v{CACC + 4 * g + 1}")
        a(f"v_cvt_pk_bf16_f32 v{u + 1}, v{CACC + 4 * g + 2}, v{CACC + 4 * g + 3}")
        a(f"buffer_store_dwordx2 {vr(u, 2)}, v{T2}, {sr(SRD_WS, 4)}, s{sT0} offen offset:{16 * g} sc1")
    a(f"s_lshr_b32 s{sT1}, s{sJOB}, 1")
    a(f"s_mul_i32 s{sT1}, s{sT1}, {D}")
    a(f"s_add_u32 s{sT1}, s{sT1}, s{sCH}")
    a(f"s_lshl_b32 s{sT1}, s{sT1}, 4")
    a(f"s_add_u32 s{sT1}, s{sT1}, {WS_ZFLAG}")
    a("s_waitcnt vmcnt(0)")
    put_flag(a, sT1)
    a.label(end)


def tail(a):
    a(f"s_mul_i32 s{sT2}, s{sPB}, {64 * D * 2}")
    a(f"s_add_u32 s{sT2}, s{sT2}, s{sWG}")
    a(f"s_mov_b32 s{sXG}, s{sT2}")
    a(f"s_mov_b32 s{sN}, s{sWAVE}")
    a.label("L_t_xl")
    a(f"s_mul_i32 s{sLD}, s{sN}, 1008")
    a(f"s_mul_i32 s{sT1}, s{sN}, {7 * D * 2}")
    a(f"s_add_u32 s{sT1}, s{sT1}, s{sT2}")
    dma(a, VROW, SRD_X, sT1, sLD, L_XT)
    a(f"s_add_u32 s{sN}, s{sN}, 8")
    a(f"s_cmp_lt_u32 s{sN}, 10")
    a("s_cbranch_scc1 L_t_xl")
    lab = a.newlabel("nle")
    a(f"s_cmp_lg_u32 s{sWAVE}, 2")
    a(f"s_cbranch_scc1 {lab}")
    a(f"s_mov_b32 s{sLD}, {8 * 9216 + 8192}")
    dma(a, VWOLE, SRD_WO, sWG, sLD)
    a.label(lab)
    if not BRANCH_B:
        z_loads(a)
    a(f"s_lshl_b32 s{sT0}, s{sPB}, 8")
    a(f"s_add_u32 s{sT0}, s{sT0}, {WS_G}")
    a(f"s_and_b32 s{sT1}, s{sWAVE}, 1")
    a(f"s_lshl_b32 s{sT1}, s{sT1}, 5")
    a(f"s_sub_u32 s{sT3}, s{sWAVE}, 4")
    a(f"s_lshl_b32 s{sT3}, s{sT3}, 4")
    a(f"s_cmp_lt_u32 s{sWAVE}, 4")
    a(f"s_cselect_b32 s{sT1}, s{sT1}, s{sT3}")
    a(f"s_cselect_b32 s{sT3}, 31, 15")
    a(f"v_and_b32 v{VZ}, s{sT3}, v{LANE}")
    a(f"v_add_u32 v{VZ}, s{sT1}, v{VZ}")
    a(f"v_lshlrev_b32 v{T0}, 2, v{VZ}")
    a(f"buffer_load_dword v{VG}, v{T0}, {sr(SRD_WS, 4)}, s{sT0} offen sc1")
    for r in range(2):
        a(f"v_mov_b32 v{O[r] + 11}, v{NEGM[r]}")
    a(f"s_cmp_eq_u32 s{sKH}, 0")
    a("s_cbranch_scc1 L_kh0")
    for j in range(12):
        a(f"v_mov_b32 v{SB[0] + j}, v{O[0] + j}")
        a(f"v_mov_b32 v{SB[1] + j}, v{O[1] + j}")
    a("s_branch L_khj")
    a.label("L_kh0")
    for j in range(12):
        a(f"v_mov_b32 v{SB[0] + j}, v{O[1] + j}")
        a(f"v_mov_b32 v{SB[1] + j}, v{O[0] + j}")
    a.label("L_khj")
    a(f"s_xor_b32 s{sT0}, s{sKH}, 1")
    a(f"s_add_u32 s{sT0}, s{sT0}, s{sRT0}")
    a(f"s_add_u32 s{sRT0}, s{sRT0}, s{sKH}")
    a(f"s_mul_i32 s{sT0}, s{sT0}, 3072")
    a(f"s_add_u32 s{sT0}, s{sT0}, {L_EX}")
    a(f"v_add_u32 v{T0}, s{sT0}, v{L16}")
    a(f"s_mul_i32 s{sT0}, s{sRT0}, 3072")
    a(f"s_add_u32 s{sT0}, s{sT0}, {L_EX}")
    a(f"v_add_u32 v{T1}, s{sT0}, v{L16}")
    a("s_barrier")
    stamp(a, 4)
    for i in range(3):
        a(f"ds_write_b128 v{T0}, {vr(SB[0] + 4 * i, 4)} offset:{1024 * i}")
    a("s_waitcnt vmcnt(0) lgkmcnt(0)")
    a("s_barrier")
    keep, oth = SB[1], SB[0]
    for i in range(3):
        a(f"ds_read_b128 {vr(oth + 4 * i, 4)}, v{T1} offset:{1024 * i}")
    sPT, sHEAD = sCUR, sNXT
    a(f"s_and_b32 s{sT0}, s{sRT0}, 1")
    a(f"s_lshl_b32 s{sPT}, s{sPB}, 1")
    a(f"s_add_u32 s{sPT}, s{sPT}, s{sT0}")
    a(f"s_lshr_b32 s{sT0}, s{sRT0}, 1")
    a(f"s_lshl_b32 s{sHEAD}, s{sHQ}, 2")
    a(f"s_add_u32 s{sHEAD}, s{sHEAD}, s{sT0}")
    a(f"s_mul_i32 s{sT0}, s{sPT}, 36")
    a(f"s_add_u32 s{sT2}, s{sT0}, s{sHEAD}")
    a(f"s_lshl_b32 s{sT2}, s{sT2}, 10")
    a(f"s_add_u32 s{sT2}, s{sT2}, {WS_OF}")
    a(f"s_lshr_b32 s{sT1}, s{sHEAD}, 3")
    a(f"s_add_u32 s{sT0}, s{sT0}, s{sT1}")
    a(f"s_add_u32 s{sT0}, s{sT0}, 32")
    a(f"s_lshl_b32 s{sT0}, s{sT0}, 10")
    a(f"s_and_b32 s{sT1}, s{sHEAD}, 4")
    a(f"s_lshl_b32 s{sT1}, s{sT1}, 7")
    a(f"s_add_u32 s{sT0}, s{sT0}, s{sT1}")
    a(f"s_and_b32 s{sT1}, s{sHEAD}, 3")
    a(f"s_lshl_b32 s{sT1}, s{sT1}, 2")
    a(f"s_add_u32 s{sT0}, s{sT0}, s{sT1}")
    a(f"s_add_u32 s{sT3}, s{sT0}, {WS_OF}")
    a("s_waitcnt lgkmcnt(0)")
    a(f"v_min_f32 v{T0}, v{keep + 11}, v{oth + 11}")
    a(f"v_sub_f32 v{T1}, v{T0}, v{keep + 11}")
    a(f"v_sub_f32 v{T2}, v{T0}, v{oth + 11}")
    a(f"v_exp_f32 v{T1}, v{T1}")
    a(f"v_exp_f32 v{T2}, v{T2}")
    a("s_nop 0")
    a(f"v_mul_f32 v{T3}, v{keep + 10}, v{T1}")
    a(f"v_fmac_f32 v{T3}, v{oth + 10}, v{T2}")
    a(f"v_rcp_f32 v{T3}, v{T3}")
    a("s_nop 0")
    a(f"v_mul_f32 v{T1}, v{T1}, v{T3}")
    a(f"v_mul_f32 v{T2}, v{T2}, v{T3}")
    for j in range(10):
        a(f"v_mul_f32 v{keep + j}, v{keep + j}, v{T1}")
        a(f"v_fmac_f32 v{keep + j}, v{oth + j}, v{T2}")
    for j in range(5):
        a(f"v_cvt_pk_bf16_f32 v{P + j}, v{keep + 2 * j}, v{keep + 2 * j + 1}")
    a(f"buffer_store_dwordx4 {vr(P, 4)}, v{L16}, {sr(SRD_WS, 4)}, s{sT2} offen sc1")
    a("s_mov_b32 exec_hi, 0")
    a(f"buffer_store_dword v{P + 4}, v{L16}, {sr(SRD_WS, 4)}, s{sT3} offen sc1")
    a("s_mov_b32 exec_hi, -1")
    AF = lambda s: (72 + 4 * s) if s < 22 else (184 + 4 * (s - 22))
    a(f"s_cmp_ge_u32 s{sWAVE}, 4")
    a("s_cbranch_scc1 L_t_a16")
    afrag32_addr(a, VA0, L_WOI)
    a(f"v_add_u32 v{VXB}, {18 * 2304}, v{VA0}")
    for s in range(36):
        b, o = (VA0, s) if s < 18 else (VXB, s - 18)
        a(f"ds_read_b64_tr_b16 {vr(AF(s), 2)}, v{b} offset:{o * 2304}")
        a(f"ds_read_b64_tr_b16 {vr(AF(s) + 2, 2)}, v{b} offset:{o * 2304 + 576}")
        if s % 6 == 5:
            a("s_waitcnt lgkmcnt(2)")
    a("s_branch L_t_aj")
    a.label("L_t_a16")
    afrag16_addr(a, VA0, L_WOI)
    a(f"v_add_u32 v{VXB}, {9 * 4608}, v{VA0}")
    for s in range(18):
        b, o = (VA0, s) if s < 9 else (VXB, s - 9)
        a(f"ds_read_b64_tr_b16 {vr(AF(s), 2)}, v{b} offset:{o * 4608}")
        a(f"ds_read_b64_tr_b16 {vr(AF(s) + 2, 2)}, v{b} offset:{o * 4608 + 576}")
        if s % 6 == 5:
            a("s_waitcnt lgkmcnt(2)")
    a.label("L_t_aj")
    a("s_waitcnt vmcnt(0) lgkmcnt(0)")
    a("s_barrier")
    lab = a.newlabel("np")
    a(f"s_cmp_lg_u32 s{sWAVE}, 4")
    a(f"s_cbranch_scc1 {lab}")
    a(f"s_lshl_b32 s{sT3}, s{sPB}, 7")
    a(f"s_add_u32 s{sT3}, s{sT3}, {WS_OFLAG}")
    a(f"s_lshl_b32 s{sT2}, s{sHQ}, 4")
    a(f"s_add_u32 s{sT2}, s{sT2}, s{sT3}")
    put_flag(a, sT2)
    a(f"v_and_b32 v{T0}, 7, v{LANE}")
    a(f"v_lshlrev_b32 v{T0}, 4, v{T0}")
    poll_flags(a, sT3, T0, 1, sleep=1)
    a.label(lab)
    if BRANCH_B:
        lab = a.newlabel("nz")
        a(f"s_cmp_lg_u32 s{sWAVE}, 5")
        a(f"s_cbranch_scc1 {lab}")
        a(f"s_lshr_b32 s{sT3}, s{sPB}, 4")
        a(f"s_mul_i32 s{sT3}, s{sT3}, {D}")
        a(f"s_mul_i32 s{sT2}, s{sHQ}, 72")
        a(f"s_add_u32 s{sT3}, s{sT3}, s{sT2}")
        a(f"s_lshl_b32 s{sT3}, s{sT3}, 4")
        a(f"s_add_u32 s{sT3}, s{sT3}, {WS_ZFLAG}")
        poll_flags(a, sT3, L16, 1, sleep=1)
        a(f"s_add_u32 s{sT3}, s{sT3}, 128")
        poll_flags(a, sT3, L16, 1, sleep=1)
        z_loads(a, True)
        a.label(lab)
    a("s_barrier")
    stamp(a, 6)
    a(f"s_lshr_b32 s{sT0}, s{sWAVE}, 2")
    a(f"s_mul_i32 s{sLD}, s{sT0}, {36 * 1024}")
    a(f"s_and_b32 s{sT0}, s{sWAVE}, 3")
    a(f"s_lshl_b32 s{sT0}, s{sT0}, 10")
    a(f"s_add_u32 s{sLD}, s{sLD}, s{sT0}")
    a(f"s_mul_i32 s{sT1}, s{sPB}, {72 * 1024}")
    a(f"s_add_u32 s{sT1}, s{sT1}, {WS_OF}")
    a(f"s_add_u32 s{sT1}, s{sT1}, s{sLD}")
    for i in range(9):
        dma(a, L16, SRD_WS, sT1, sLD, sc1=True)
        a(f"s_add_u32 s{sLD}, s{sLD}, 4096")
        a(f"s_add_u32 s{sT1}, s{sT1}, 4096")
    TACC, BF = 40, 56
    for j in range(16):
        a(f"v_mov_b32 v{TACC + j}, 0")
    a(f"s_cmp_ge_u32 s{sWAVE}, 4")
    a("s_cbranch_scc1 L_t_m16")
    a(f"s_and_b32 s{sT0}, s{sWAVE}, 1")
    a(f"s_mul_i32 s{sT0}, s{sT0}, {36 * 1024}")
    a(f"v_add_u32 v{VXB}, s{sT0}, v{L16}")
    for g in range(3):
        a(f"s_waitcnt vmcnt({6 - 3 * g})")
        a("s_barrier")
        pipelined(a, 12,
                  lambda s: a(f"ds_read_b128 {vr(BF + 4 * (s % 4), 4)}, v{VXB} offset:{(12 * g + s) * 1024}"),
                  lambda s: mfma16(a, TACC, AF(12 * g + s), BF + 4 * (s % 4), TACC), per=1)
    stamp(a, 7)
    epilogue(a, TACC, True)
    a("s_branch L_t_store")
    a.label("L_t_m16")
    a(f"v_lshrrev_b32 v{T0}, 5, v{LANE}")
    a(f"v_bfe_u32 v{T1}, v{LANE}, 4, 1")
    a(f"v_and_b32 v{T2}, 31, v{VZ}")
    a(f"v_lshl_add_u32 v{T2}, v{T1}, 5, v{T2}")
    a(f"v_lshlrev_b32 v{T2}, 4, v{T2}")
    a(f"v_lshl_add_u32 v{T2}, v{T0}, 10, v{T2}")
    a(f"v_lshrrev_b32 v{T3}, 5, v{VZ}")
    a(f"v_mul_u32_u24 v{T3}, {36 * 1024}, v{T3}")
    a(f"v_add_u32 v{VXB}, v{T2}, v{T3}")
    for g in range(3):
        a(f"s_waitcnt vmcnt({6 - 3 * g})")
        a("s_barrier")
        pipelined(a, 6,
                  lambda s: a(f"ds_read_b128 {vr(BF + 4 * (s % 4), 4)}, v{VXB} offset:{(6 * g + s) * 2048}"),
                  lambda s: mfma1616(a, TACC, AF(6 * g + s), BF + 4 * (s % 4)), per=1)
    epilogue(a, TACC, False)
    a.label("L_t_store")
    a("s_waitcnt lgkmcnt(0)")
    a("s_barrier")
    a(f"s_mov_b32 s{sN}, s{sWAVE}")
    a.label("L_t_sl")
    a(f"s_mul_i32 s{sT0}, s{sN}, 1008")
    a(f"s_add_u32 s{sT0}, s{sT0}, {L_XT}")
    a(f"v_add_u32 v{T0}, s{sT0}, v{L16}")
    a(f"ds_read_b128 {vr(BF, 4)}, v{T0}")
    a(f"s_mul_i32 s{sT1}, s{sN}, {7 * D * 2}")
    a(f"s_add_u32 s{sT1}, s{sT1}, s{sXG}")
    a(f"s_cmp_eq_u32 s{sN}, 9")
    a(f"s_cselect_b32 s{sT0}, 9, 63")
    a(f"v_cmp_gt_u32 vcc, s{sT0}, v{LANE}")
    a(f"s_and_saveexec_b64 {sr(sEX, 2)}, vcc")
    a("s_waitcnt lgkmcnt(0)")
    a(f"buffer_store_dwordx4 {vr(BF, 4)}, v{VROW}, {sr(SRD_OUT, 4)}, s{sT1} offen")
    a(f"s_mov_b64 exec, {sr(sEX, 2)}")
    a(f"s_add_u32 s{sN}, s{sN}, 8")
    a(f"s_cmp_lt_u32 s{sN}, 10")
    a("s_cbranch_scc1 L_t_sl")


def z_loads(a, single=False):
    a(f"v_lshrrev_b32 v{T0}, 3, v{LANE}")
    a(f"v_and_b32 v{T1}, 7, v{LANE}")
    a(f"v_lshlrev_b32 v{T0}, 12, v{T0}")
    a(f"v_lshl_add_u32 v{T0}, v{T1}, 4, v{T0}")
    a(f"s_mul_i32 s{sT2}, s{sHQ}, {72 * 4096}")
    a(f"s_lshl_b32 s{sT0}, s{sPB}, 7")
    a(f"s_add_u32 s{sT2}, s{sT2}, s{sT0}")
    a(f"s_add_u32 s{sT2}, s{sT2}, {WS_ZT}")
    if single:
        a(f"s_mov_b32 s{sN}, 0")
    else:
        a(f"s_xor_b32 s{sN}, s{sWAVE}, 7")
    lab = a.newlabel("zl")
    a.label(lab)
    a(f"s_lshl_b32 s{sLD}, s{sN}, 10")
    a(f"s_lshl_b32 s{sT1}, s{sN}, 15")
    a(f"s_add_u32 s{sT1}, s{sT1}, s{sT2}")
    dma(a, T0, SRD_WS, sT1, sLD, L_ZT, sc1=True)
    a(f"s_add_u32 s{sN}, s{sN}, {1 if single else 8}")
    a(f"s_cmp_lt_u32 s{sN}, 9")
    a(f"s_cbranch_scc1 {lab}")


def epilogue(a, acc, full):
    E0, XRr, ZR = 16, 32, 34
    if full:
        a(f"v_lshrrev_b32 v{T0}, 5, v{LANE}")
        a(f"s_lshr_b32 s{sT2}, s{sWAVE}, 1")
        a(f"s_lshl_b32 s{sT2}, s{sT2}, 5")
    else:
        a(f"v_bfe_u32 v{T0}, v{LANE}, 4, 1")
        a(f"s_mov_b32 s{sT2}, 64")
    a(f"v_mul_u32_u24 v{T1}, 144, v{VZ}")
    a(f"v_lshl_add_u32 v{T1}, v{T0}, 3, v{T1}")
    a(f"s_lshl_b32 s{sT0}, s{sT2}, 1")
    a(f"s_add_u32 s{sT0}, s{sT0}, {L_XT}")
    a(f"v_add_u32 v{T1}, s{sT0}, v{T1}")
    a(f"v_bfe_u32 v{T2}, v{LANE}, 2, 2")
    a(f"v_lshl_add_u32 v{T2}, v{T0}, 2, v{T2}")
    a(f"v_lshlrev_b32 v{T2}, 7, v{T2}")
    a(f"v_and_b32 v{T3}, 48, v{VZ}")
    a(f"v_lshl_add_u32 v{T2}, v{T3}, 1, v{T2}")
    a(f"v_and_b32 v{T3}, 3, v{LANE}")
    a(f"v_lshl_add_u32 v{T2}, v{T3}, 3, v{T2}")
    a(f"s_lshl_b32 s{sT0}, s{sT2}, 7")
    a(f"s_add_u32 s{sT0}, s{sT0}, {L_ZT}")
    a(f"v_add_u32 v{T2}, s{sT0}, v{T2}")
    a(f"v_sub_f32 v{T4}, 1.0, v{VG}")
    a(f"v_cvt_pk_bf16_f32 v{T4}, v{T4}, v{T4}")
    a(f"v_and_b32 v{T4}, 0xffff0000, v{T4}")
    a(f"s_mov_b32 s{sT3}, 0xffff0000")
    ng = 4 if full else 1
    XZ = 184
    for g in range(ng):
        a(f"ds_read_b64 {vr(XZ + 4 * g, 2)}, v{T1} offset:{16 * g}")
        a(f"ds_read_b64_tr_b16 {vr(XZ + 4 * g + 2, 2)}, v{T2} offset:{1024 * g}")
    for g in range(ng):
        a(f"v_cvt_pk_bf16_f32 v{E0}, v{acc + 4 * g}, v{acc + 4 * g + 1}")
        a(f"v_cvt_pk_bf16_f32 v{E0 + 1}, v{acc + 4 * g + 2}, v{acc + 4 * g + 3}")
        for i in range(2):
            a(f"v_lshlrev_b32 v{E0 + 2 + 2 * i}, 16, v{E0 + i}")
            a(f"v_and_b32 v{E0 + 3 + 2 * i}, s{sT3}, v{E0 + i}")
        for e in range(4):
            a(f"v_mul_f32 v{E0 + 2 + e}, v{VG}, v{E0 + 2 + e}")
        if g == 0:
            a("s_waitcnt lgkmcnt(0)")
        for i in range(2):
            a(f"v_lshlrev_b32 v{E0 + 6 + 2 * i}, 16, v{XZ + 4 * g + i}")
            a(f"v_and_b32 v{E0 + 7 + 2 * i}, s{sT3}, v{XZ + 4 * g + i}")
            a(f"v_lshlrev_b32 v{E0 + 10 + 2 * i}, 16, v{XZ + 4 * g + 2 + i}")
            a(f"v_and_b32 v{E0 + 11 + 2 * i}, s{sT3}, v{XZ + 4 * g + 2 + i}")
        for e in range(4):
            a(f"v_mul_f32 v{E0 + 6 + e}, v{E0 + 6 + e}, v{E0 + 10 + e}")
            a(f"v_fmac_f32 v{E0 + 2 + e}, v{T4}, v{E0 + 6 + e}")
        a(f"v_cvt_pk_bf16_f32 v{XRr}, v{E0 + 2}, v{E0 + 3}")
        a(f"v_cvt_pk_bf16_f32 v{XRr + 1}, v{E0 + 4}, v{E0 + 5}")
        if not full:
            a("s_mov_b32 exec_hi, 0")
        a(f"ds_write_b64 v{T1}, {vr(XRr, 2)} offset:{16 * g}")
        if not full:
            a("s_mov_b32 exec_hi, -1")


def gen_kz(a, name):
    kernel_begin(a, name)
    a("s_cmp_ge_u32 s2, 256")
    a("s_cbranch_scc1 L_end")
    a("s_load_dwordx8 s[64:71], s[0:1], 0")
    a(f"s_load_dwordx2 {sr(sGW, 2)}, s[0:1], 88")
    a(f"s_load_dwordx2 {sr(sWS, 2)}, s[0:1], 112")
    a(f"s_load_dwordx2 {sr(sDBG, 2)}, s[0:1], 104")
    a(f"s_load_dwordx2 {sr(sOUT, 2)}, s[0:1], 96")
    a(f"s_load_dwordx2 {sr(sWO, 2)}, s[0:1], 32")
    a(f"s_memrealtime {sr(sEX, 2)}")
    stamp(a, 0)
    a(f"v_lshrrev_b32 v{T0}, 6, v0")
    a(f"v_and_b32 v{LANE}, 63, v0")
    a(f"v_readfirstlane_b32 s{sWAVE}, v{T0}")
    a(f"s_and_b32 s{sT0}, s2, 7")
    a(f"s_lshr_b32 s{sT1}, s2, 3")
    a(f"s_and_b32 s{sHQ}, s{sT1}, 7")
    a(f"s_lshr_b32 s{sT1}, s{sT1}, 3")
    a(f"s_lshl_b32 s{sPB}, s{sT0}, 2")
    a(f"s_add_u32 s{sPB}, s{sPB}, s{sT1}")
    a(f"s_mov_b32 s{sHALF}, 0")
    a(f"s_mov_b32 s{sHALF + 1}, -1")
    a(f"s_lshr_b32 s{sKH}, s{sWAVE}, 2")
    a(f"s_and_b32 s{sRT0}, s{sWAVE}, 3")
    a(f"s_lshl_b32 s{sRT0}, s{sRT0}, 1")
    a(f"s_and_b32 s{sSUB}, s{sHQ}, 3")
    a(f"s_lshl_b32 s{sT0}, s{sPB}, 1")
    a(f"s_add_u32 s{sT0}, s{sT0}, s{sHQ}")
    a(f"s_mul_i32 s{sT1}, s{sT0}, 7282")
    a(f"s_lshr_b32 s{sT1}, s{sT1}, 16")
    a(f"s_mul_i32 s{sT1}, s{sT1}, 9")
    a(f"s_sub_u32 s{sST0}, s{sT0}, s{sT1}")
    a(f"v_lshlrev_b32 v{L16}, 4, v{LANE}")
    a(f"v_lshlrev_b32 v{L8}, 3, v{LANE}")
    a(f"v_mov_b32 v{VCNT}, {L_CNT}")
    a(f"v_mov_b32 v{VONE}, 1")
    a(f"v_lshrrev_b32 v{T0}, 3, v{LANE}")
    a(f"v_lshrrev_b32 v{T1}, 4, v{LANE}")
    a(f"v_and_b32 v{T2}, 7, v{LANE}")
    a(f"v_xor_b32 v{T2}, v{T2}, v{T1}")
    a(f"v_mul_u32_u24 v{T0}, {D * 2}, v{T0}")
    a(f"v_lshl_add_u32 v{VDX0}, v{T2}, 4, v{T0}")
    a(f"v_xor_b32 v{VDX1}, 64, v{VDX0}")
    a(f"v_add_u32 v{VDX1}, {8 * D * 2}, v{VDX1}")
    a(f"v_lshrrev_b32 v{T0}, 2, v{LANE}")
    a(f"v_and_b32 v{T1}, 3, v{LANE}")
    a(f"v_mul_u32_u24 v{T0}, 36, v{T0}")
    a(f"v_lshl_add_u32 v{VDK}, v{T1}, 4, v{T0}")
    a(f"s_lshl_b32 s{sT0}, s{sPB}, 2")
    a(f"s_add_u32 s{sT1}, s{sT0}, s{sWAVE}")
    a(f"s_mul_i32 s{sXG}, s{sT1}, {16 * D * 2}")
    a(f"s_mul_i32 s{sWG}, s{sHQ}, 144")
    a("s_waitcnt lgkmcnt(0)")
    srd(a, SRD_X, sX, sX + 1, S * D * 2)
    a(f"s_cmp_lt_u32 s{sHQ}, 4")
    a(f"s_cselect_b32 s{sT0}, s{sWK}, s{sWV}")
    a(f"s_cselect_b32 s{sT1}, s{sWK + 1}, s{sWV + 1}")
    srd(a, SRD_KVW, sT0, sT1, D * DH * 2)
    srd(a, SRD_GW, sGW, sGW + 1, D * 2)
    srd(a, SRD_WQ, sWQ, sWQ + 1, D * D * 2)
    srd(a, SRD_WS, sWS, sWS + 1, WS_END)
    srd(a, SRD_DMA, sWS, sWS + 1, WS_KV + KV_BYTES)
    a(f"s_cmp_lt_u32 s{sWAVE}, 4")
    a("s_cbranch_scc1 L_lo")
    a("s_setprio 3")
    a(f"s_cmp_eq_u32 s{sWAVE}, 4")
    a("s_cbranch_scc1 L_w4")
    team_issue(a)
    a("s_barrier")
    team_compute(a)
    a("s_branch L_q_done")
    a.label("L_w4")
    a(f"v_mov_b32 v{T0}, 0")
    a(f"v_lshl_add_u32 v{T1}, v{LANE}, 2, v{VCNT}")
    a(f"ds_write_b32 v{T1}, v{T0}")
    a(f"s_cmp_lg_u32 s2, 0")
    a("s_cbranch_scc1 L_notag")
    a(f"s_or_b32 s{sEX}, s{sEX}, 1")
    a(f"v_mov_b32 v{TAG}, s{sEX}")
    a(f"v_mov_b32 v{TAG + 1}, s{sEX + 1}")
    a("s_mov_b64 exec, 1")
    a(f"global_store_dwordx2 v{T0}, {vr(TAG, 2)}, {sr(sDBG, 2)} sc1")
    a("s_mov_b64 exec, -1")
    a.label("L_notag")
    a("s_waitcnt lgkmcnt(0)")
    a("s_barrier")
    cnt_wait(a, C_RDY + 4, 4)
    get_tag(a)
    a(f"s_mov_b32 s{sT3}, {WS_FLAG}")
    poll_flags(a, sT3, L16, 4)
    stamp(a, 5)
    a("s_setprio 0")
    a("s_branch L_q_done")
    a.label("L_lo")
    for i, dst in enumerate((VDW0, VDW1)):
        a(f"s_lshl_b32 s{sT0}, s{sWAVE}, 7")
        a(f"s_add_u32 s{sT0}, s{sT0}, {64 * i}")
        a(f"v_add_u32 v{T0}, s{sT0}, v{LANE}")
        wpat(a, dst, T0)
    a(f"v_add_u32 v{T0}, 512, v{LANE}")
    wpat(a, VDE, T0)
    a("s_barrier")
    stream(a, 0, 7, False)
    q_full(a)
    a("s_branch L_q_done")
    a.label("L_q_t2")
    q_t2(a)
    a.label("L_q_done")
    a("s_barrier")
    stamp(a, 8)
    a(f"v_mov_b32 v{VDMA}, v{L16}")
    a(f"s_lshl_b32 s{sL}, s{sWAVE}, 10")
    a(f"s_add_u32 s{sG}, s{sL}, {WS_KV}")
    a(f"s_mov_b32 s{sGSTEP}, 8192")
    a(f"s_mov_b32 s{sLSTEP}, 8192")
    a(f"s_mov_b32 s{sREM}, 19")
    for i in range(5):
        dma_slot(a)
    a(f"v_and_b32 v{T0}, 31, v{LANE}")
    a(f"v_lshrrev_b32 v{T1}, 5, v{LANE}")
    a(f"v_mul_u32_u24 v{T2}, {QPITCH}, v{T0}")
    a(f"s_mul_i32 s{sT0}, s{sRT0}, 18")
    a(f"s_add_u32 s{sT0}, s{sT0}, {L_QS}")
    a(f"v_add_u32 v{T2}, s{sT0}, v{T2}")
    a(f"v_lshl_add_u32 v{T3}, v{T1}, 4, v{T2}")
    a(f"v_add_u32 v{T4}, {32 * QPITCH}, v{T3}")
    for r, base in ((0, T3), (1, T4)):
        a(f"ds_read2_b32 {vr(Q1[r], 2)}, v{base} offset0:0 offset1:1")
        a(f"ds_read2_b32 {vr(Q1[r] + 2, 2)}, v{base} offset0:2 offset1:3")
        a(f"ds_read_b32 v{QV[r] + 1}, v{T2} offset:{32 + r * 32 * QPITCH}")
    a(f"v_min_u32 v{VSL}, 19, v{T0}")
    a(f"v_cmp_eq_u32 vcc, 30, v{T0}")
    a("s_nop 1")
    a(f"v_cndmask_b32 v{VSL}, v{VSL}, 18, vcc")
    a(f"v_lshlrev_b32 v{VSL}, 4, v{VSL}")
    a(f"v_mul_u32_u24 v{T2}, 320, v{T1}")
    a(f"v_add_u32 v{VSL}, v{VSL}, v{T2}")
    srd(a, SRD_WO, sWO, sWO + 1, D * D * 2)
    srd(a, SRD_OUT, sOUT, sOUT + 1, S * D * 2)
    a(f"s_lshl_b32 s{sT0}, s{sWAVE}, 6")
    a(f"v_add_u32 v{T0}, s{sT0}, v{LANE}")
    wopat(a, VWO, VWOL, T0)
    a(f"v_add_u32 v{T0}, 512, v{LANE}")
    wopat(a, VWOE, VWOLE, T0)
    a(f"v_mul_u32_u24 v{T0}, 7282, v{LANE}")
    a(f"v_lshrrev_b32 v{T0}, 16, v{T0}")
    a(f"v_mul_u32_u24 v{T1}, 9, v{T0}")
    a(f"v_sub_u32 v{T1}, v{LANE}, v{T1}")
    a(f"v_mul_u32_u24 v{T0}, {D * 2}, v{T0}")
    a(f"v_lshl_add_u32 v{VROW}, v{T1}, 4, v{T0}")
    if BRANCH_B:
        a("s_load_dwordx8 s[64:71], s[0:1], 48")
        a(f"s_load_dwordx2 {sr(sDP, 2)}, s[0:1], 80")
        job_assign(a)
        a(f"v_mov_b32 v{VUS}, 0")
    a("s_waitcnt lgkmcnt(0)")
    attention(a)
    tail(a)
    if DIAG:
        a("s_waitcnt vmcnt(0)")
    stamp(a, 9)
    dump_stamps(a)
    a.label("L_end")
    a("s_endpgm")
    out_of_line(a)
    return dict(grid=256, block=512, lds=163840, vgpr=NVGPR, sgpr=102)
```

```python
S = 2048
D = 576
H = 32
DH = 18

STAGE = 19456
K2_OFF_IN_STAGE = 8192
V_OFF_IN_STAGE = 9216
VGRP = 640
KV_BYTES = 8 * STAGE

UPITCH = 4160

WS_KV = 0
WS_Q = 0x40000
WS_OF = WS_Q + S * D * 2
WS_ZT = WS_OF + S * D * 2
WS_G = WS_ZT + S * D * 2
WS_U = WS_G + S * 4 + 4096
WS_END = WS_U + D * 2 * UPITCH + 4096 + 8192
WS_DIAG = WS_END - 2048
WS_FLAG = 0x30000
WS_GD = WS_END - 8192 - 2048
WS_OFLAG = WS_FLAG + 4096
WS_UFLAG = WS_FLAG + 8192
WS_ZFLAG = WS_FLAG + 12288
UP2 = 4112
```

```python
import sys, os
sys.path.insert(0, "dev")
os.environ.setdefault("BB", "1")
from asmlib import *
import kz
NAME = "gated_mix__grouped_kv_mqa__ssm_conv_h3__prompt"
HEADER = open(f"cdna_kernels/{NAME}.s.ref").read().split("; @launch")[0]
a = Asm()
info = kz.gen_kz(a, NAME + "_kernel")
txt = HEADER + f"; @launch grid=({info['grid']},1,1) block=({info['block']},1,1) lds={info['lds']}\n" + '.amdgcn_target "amdgcn-amd-amdhsa--gfx950"\n' + a.text() + kernel_desc(NAME + "_kernel", info['vgpr'], info['sgpr'])
open(sys.argv[1], "w").write(txt)
```

```python
import os, math, struct
from asmlib import *
from layout import *

env = lambda k, d: int(os.environ.get(k, str(d)))
DIAG = env("DIAG", 0)
GD = env("GD", 0)
GDS = [int(x) for x in os.environ.get("GDS", "5,1").split(",")]
BRANCH_B = env("BB", 0)
PRIOG = env("PRIOG", 2)
SPIN = 20000

LANE = 1
VK, VKN, VK2, VK2N, VV, VVN = 2, 3, 4, 5, 6, 7
L16, L8, VSL = 8, 9, 10
T0, T1, T2, T3, T4 = 11, 12, 13, 14, 15
K1F, K2F, VA, VB, P = 16, 20, 24, 28, 32
SB = [40, 56]
O, NEGM, Q1, QV = [72, 116], [88, 132], [104, 148], [108, 152]
VCNT, VONE, VDMA = 160, 161, 162
TAG = 164
PL = 166
VWO, VWOE, VWOL, VWOLE, VROW, VZ, VG = 174, 175, 176, 177, 178, 179, 180
XR = 184
NVGPR = 256
VDX0, VDX1, VDW0, VDW1, VDE, VDK = 16, 17, 18, 19, 20, 21
VA0, VXB, VBX, GW = 22, 23, 24, 30
FR, ACC, PKD = 40, 72, 88

sWS, sTAG, sOUT, sWO = 4, 6, 8, 10
SRD_WS, SRD_DMA = 12, 16
sXB = 20
sREM = 23
sWAVE, sPB, sHQ, sSTAGE, sG, sT0 = 24, 25, 26, 27, 28, 29
sHALF = 30
sT1, sT2, sCUR, sNXT, sKH, sRT0, sL, sLD = 32, 33, 34, 35, 36, 37, 38, 39
sDBG = 40
sGSTEP, sLSTEP = 42, 43
sST = 44
sX, sWQ, sWK, sWV = 64, 66, 68, 70
sGW = 72
sXG, sWG = 74, 75
SRD_X, SRD_WQ, SRD_KVW, SRD_GW = 76, 80, 84, 88
sST0, sI, sCK, sT3, sT4, sSUB = 92, 93, 94, 95, 96, 97
sEX = 98
sN = 100
SRD_WO, SRD_OUT = SRD_WQ, SRD_KVW
SRD_J = SRD_GW
sJOB, sCH = 101, 3
sBP = 64
sDP = sGW

SLOT = 17408
L_WKV = 7 * SLOT
L_XK78 = L_WKV + 36864
L_CNT = L_XK78 + 4096
QPITCH = 152
L_QS = 40960
C_TEAM, C_KVFREE, C_RDY, C_G0DONE, C_S3, C_S2, C_RED = 0, 4, 8, 20, 24, 28, 32
GROUPS = [(0, 3), (3, 7), (7, 9)]
PAIR = 2 * STAGE
L_WOI = 0
L_XT = 82944
L_ZT = L_XT + 10240
L_EX = 3 * PAIR
L_OT = 0

QSCALE = struct.unpack("<I", struct.pack("<f", math.log2(math.e) / math.sqrt(DH)))[0]
ORDER = "e0 e1 PVb e2 e3 e4 e5 e6 M1 e7 c0 c1 c2 c3 e8 e9 M2 e10 e11 e12 e13 e14 PVa e15 c4 c5 c6 c7"


def f32bits(x):
    return struct.unpack("<I", struct.pack("<f", x))[0]


def stamp(a, i):
    if DIAG:
        a(f"s_memrealtime {sr(sST + 2 * i, 2)}")


def dump_stamps(a):
    if not DIAG:
        return
    if DIAG == 2:
        lab = a.newlabel("nogd")
        a("s_waitcnt lgkmcnt(0)")
        a(f"s_cmp_lg_u32 s{sWAVE}, 4")
        a(f"s_cbranch_scc1 {lab}")
        a("s_mov_b64 exec, 1")
        a(f"v_mov_b32 v{T1}, 0")
        for i, st in enumerate((0, 5, 8, 1, 4, 6, 9)):
            a(f"v_mov_b32 v{T0}, s{sST + 2 * st}")
            a(f"global_atomic_umax v{T1}, v{T0}, {sr(sDBG, 2)} offset:{8 + 8 * i}")
            a(f"v_not_b32 v{T2}, v{T0}")
            a(f"global_atomic_umax v{T1}, v{T2}, {sr(sDBG, 2)} offset:{12 + 8 * i}")
            a("s_waitcnt vmcnt(0)")
        a.label(lab)
        return
    lab = a.newlabel("nogd")
    a("s_waitcnt lgkmcnt(0)")
    a(f"s_cmp_lg_u32 s{sWAVE}, {GD}")
    a(f"s_cbranch_scc1 {lab}")
    a(f"s_lshl_b32 s{sT0}, s2, 4")
    a(f"s_add_u32 s{sT0}, s{sT0}, {WS_GD}")
    a("s_mov_b64 exec, 1")
    for i, st in enumerate((0, GDS[1], 9, GDS[0])):
        a(f"v_mov_b32 v{T0}, s{sST + 2 * st}")
        a(f"v_mov_b32 v{T1}, s{sT0}")
        a(f"global_store_dword v{T1}, v{T0}, {sr(sWS, 2)} offset:{4 * i}")
    a.label(lab)


def mfma16(a, d, A, B, C):
    c = "0" if C is None else vr(C, 16)
    a(f"v_mfma_f32_32x32x16_bf16 {vr(d, 16)}, {vr(A, 4)}, {vr(B, 4)}, {c}")


def mfma8(a, d, A, B, C):
    a(f"v_mfma_f32_32x32x8_bf16 {vr(d, 16)}, {vr(A, 2)}, {vr(B, 2)}, {vr(C, 16)}")


def mfma1616(a, d, A, B):
    a(f"v_mfma_f32_16x16x32_bf16 {vr(d, 4)}, {vr(A, 4)}, {vr(B, 4)}, {vr(d, 4)}")


def cnt_add(a, off):
    a("s_mov_b64 exec, 1")
    a(f"ds_add_u32 v{VCNT}, v{VONE} offset:{off}")
    a("s_mov_b64 exec, -1")


def cnt_wait(a, off, target):
    l0, l1 = a.newlabel("cw"), a.newlabel("cwd")
    a(f"s_mov_b32 s{sI}, 0")
    a.label(l0)
    a(f"ds_read_b32 v{T4}, v{VCNT} offset:{off}")
    a(f"s_add_u32 s{sI}, s{sI}, 1")
    a("s_waitcnt lgkmcnt(0)")
    a(f"v_readfirstlane_b32 s{sN}, v{T4}")
    a(f"s_cmp_ge_u32 s{sI}, {SPIN * 64}")
    a(f"s_cbranch_scc1 {l1}")
    a(f"s_cmp_lt_u32 s{sN}, {target}")
    a(f"s_cbranch_scc1 {l0}")
    a.label(l1)


def get_tag(a):
    a(f"s_load_dwordx2 {sr(sTAG, 2)}, {sr(sDBG, 2)}, 0")
    a("s_waitcnt lgkmcnt(0)")
    a(f"v_mov_b32 v{TAG}, s{sTAG}")
    a(f"v_mov_b32 v{TAG + 1}, s{sTAG + 1}")
    l0, l1 = a.newlabel("tg"), a.newlabel("tgd")
    a(f"s_mov_b32 s{sI}, 0")
    a(f"v_mov_b32 v{T4}, 0")
    a.label(l0)
    a(f"v_cmp_eq_u32 vcc, 0, v{TAG}")
    a("s_nop 4")
    a(f"s_cbranch_vccz {l1}")
    a(f"s_add_u32 s{sI}, s{sI}, 1")
    a(f"s_cmp_ge_u32 s{sI}, {SPIN}")
    a(f"s_cbranch_scc1 {l1}")
    a("s_sleep 4")
    a(f"global_load_dwordx2 {vr(TAG, 2)}, v{T4}, {sr(sDBG, 2)} sc1")
    a("s_waitcnt vmcnt(0)")
    a(f"s_branch {l0}")
    a.label(l1)


def put_flag(a, soff):
    a("s_mov_b64 exec, 3")
    a(f"buffer_store_dwordx2 {vr(TAG, 2)}, v{L8}, {sr(SRD_WS, 4)}, s{soff} offen sc1")
    a("s_mov_b64 exec, -1")


def poll_flags(a, soff, vaddr, nld, sleep=6):
    l0, l1 = a.newlabel("pf"), a.newlabel("pfd")
    a(f"s_mov_b32 s{sI}, 0")
    a.label(l0)
    for i in range(nld):
        a(f"buffer_load_dwordx2 {vr(PL + 2 * i, 2)}, v{vaddr}, {sr(SRD_WS, 4)}, s{soff} offen offset:{1024 * i} sc1")
    a(f"s_add_u32 s{sI}, s{sI}, 1")
    a("s_waitcnt vmcnt(0)")
    a(f"v_cmp_ne_u64 vcc, {vr(PL, 2)}, {vr(TAG, 2)}")
    for i in range(1, nld):
        a(f"v_cmp_ne_u64 {sr(sEX, 2)}, {vr(PL + 2 * i, 2)}, {vr(TAG, 2)}")
        a("s_nop 4")
        a(f"s_or_b64 vcc, vcc, {sr(sEX, 2)}")
    a("s_nop 4")
    a(f"s_cbranch_vccz {l1}")
    a(f"s_sleep {sleep}")
    a(f"s_cmp_lt_u32 s{sI}, {SPIN}")
    a(f"s_cbranch_scc1 {l0}")
    a.label(l1)


def next_chunk(a):
    a(f"s_add_u32 s{sCK}, s{sCK}, 1")
    a(f"s_cmp_eq_u32 s{sCK}, 9")
    a(f"s_cselect_b32 s{sCK}, 0, s{sCK}")


def set_chunk(a, idx_reg=None, idx=None):
    if idx is not None:
        a(f"s_add_u32 s{sCK}, s{sST0}, {idx}")
    else:
        a(f"s_add_u32 s{sCK}, s{sST0}, s{idx_reg}")
    a(f"s_sub_u32 s{sT0}, s{sCK}, 9")
    a(f"s_cmp_ge_u32 s{sCK}, 9")
    a(f"s_cselect_b32 s{sCK}, s{sT0}, s{sCK}")


def dma(a, vreg, srd_, soff, m0reg, add=0, sc1=False):
    if add:
        a(f"s_add_u32 s{sT0}, s{m0reg}, {add}")
        a(f"s_mov_b32 m0, s{sT0}")
    else:
        a(f"s_mov_b32 m0, s{m0reg}")
    a("s_nop 0")
    a(f"buffer_load_dwordx4 v{vreg}, {sr(srd_, 4)}, s{soff} offen{' sc1' if sc1 else ''} lds")


def stream(a, i0, n, own_x):
    set_chunk(a, idx=i0)
    a(f"s_lshl_b32 s{sLD}, s{sWAVE}, 11")
    a(f"s_add_u32 s{sLD}, s{sLD}, {i0 * SLOT}")
    a(f"s_mov_b32 s{sT3}, {i0 * SLOT + 16384}")
    lab, l1, l2 = a.newlabel("st"), a.newlabel("stx"), a.newlabel("ste")
    a(f"s_mov_b32 s{sN}, {n}")
    a.label(lab)
    if not own_x:
        a(f"s_cmp_eq_u32 s{sWAVE}, s{sSUB}")
        a(f"s_cbranch_scc1 {l1}")
    a(f"s_lshl_b32 s{sT1}, s{sCK}, 7")
    a(f"s_add_u32 s{sT1}, s{sT1}, s{sXG}")
    dma(a, VDX0, SRD_X, sT1, sLD)
    dma(a, VDX1, SRD_X, sT1, sLD, 1024)
    a.label(l1)
    a(f"s_mul_i32 s{sT1}, s{sCK}, {64 * D * 2}")
    a(f"s_add_u32 s{sT1}, s{sT1}, s{sWG}")
    dma(a, VDW0, SRD_WQ, sT1, sLD, 8192)
    dma(a, VDW1, SRD_WQ, sT1, sLD, 8192 + 1024)
    a(f"s_cmp_lg_u32 s{sWAVE}, s{sSUB}")
    a(f"s_cbranch_scc1 {l2}")
    dma(a, VDE, SRD_WQ, sT1, sT3)
    a.label(l2)
    a(f"s_add_u32 s{sLD}, s{sLD}, {SLOT}")
    a(f"s_add_u32 s{sT3}, s{sT3}, {SLOT}")
    next_chunk(a)
    a(f"s_sub_u32 s{sN}, s{sN}, 1")
    a(f"s_cmp_lg_u32 s{sN}, 0")
    a(f"s_cbranch_scc1 {lab}")


def wpat_rc(a, slot, col):
    a(f"v_mul_u32_u24 v{T1}, 1821, v{slot}")
    a(f"v_lshrrev_b32 v{T1}, 16, v{T1}")
    a(f"v_mul_u32_u24 v{T2}, 36, v{T1}")
    a(f"v_sub_u32 v{T2}, v{slot}, v{T2}")
    a(f"v_bfe_u32 v{T3}, v{T2}, 2, 2")
    a(f"v_and_b32 v{T4}, 3, v{T2}")
    a(f"v_lshrrev_b32 v{col}, 4, v{T2}")
    a(f"v_lshlrev_b32 v{col}, 6, v{col}")
    a(f"v_cmp_gt_u32 vcc, 32, v{T2}")
    a(f"v_lshl_add_u32 v{T2}, v{T4}, 4, v{col}")
    a("s_nop 0")
    a(f"v_cndmask_b32 v{col}, v{col}, v{T2}, vcc")
    a(f"v_cndmask_b32 v{T3}, v{T4}, v{T3}, vcc")
    a(f"v_lshl_add_u32 v{T1}, v{T1}, 2, v{T3}")


def wpat(a, dst, slot):
    wpat_rc(a, slot, dst)
    a(f"v_mul_u32_u24 v{T1}, {D * 2}, v{T1}")
    a(f"v_add_u32 v{dst}, v{dst}, v{T1}")


def wopat(a, dst, dstl, slot):
    wpat_rc(a, slot, dst)
    a(f"v_lshrrev_b32 v{T2}, 1, v{T1}")
    a(f"v_mul_u32_u24 v{T2}, 18, v{T2}")
    a(f"v_and_b32 v{T3}, 1, v{T1}")
    a(f"v_add3_u32 v{T2}, v{T2}, v{T3}, 16")
    a(f"v_mul_u32_u24 v{T2}, {D * 2}, v{T2}")
    a(f"v_add_u32 v{dstl}, v{dst}, v{T2}")
    a(f"v_lshrrev_b32 v{T2}, 4, v{T1}")
    a(f"v_mul_u32_u24 v{T2}, 18, v{T2}")
    a(f"v_and_b32 v{T3}, 3, v{T1}")
    a(f"v_add_u32 v{T2}, v{T2}, v{T3}")
    a(f"v_bfe_u32 v{T3}, v{T1}, 2, 1")
    a(f"v_lshl_add_u32 v{T2}, v{T3}, 3, v{T2}")
    a(f"v_bfe_u32 v{T3}, v{T1}, 3, 1")
    a(f"v_lshl_add_u32 v{T2}, v{T3}, 2, v{T2}")
    a(f"v_mul_u32_u24 v{T2}, {D * 2}, v{T2}")
    a(f"v_add_u32 v{dst}, v{dst}, v{T2}")


def pipelined(a, n, rd, mm, per=3, depth=3):
    for s in range(min(depth, n)):
        rd(s)
    for s in range(n):
        if s + depth < n:
            rd(s + depth)
        a(f"s_waitcnt lgkmcnt({per * min(depth, n - 1 - s)})")
        mm(s)


def afrag32_addr(a, dst, base):
    a(f"v_lshrrev_b32 v{T0}, 5, v{LANE}")
    a(f"v_bfe_u32 v{T1}, v{LANE}, 4, 1")
    a(f"v_bfe_u32 v{T2}, v{LANE}, 2, 2")
    a(f"v_and_b32 v{T3}, 3, v{LANE}")
    a(f"v_lshl_add_u32 v{T4}, v{T1}, 2, v{T3}")
    a(f"v_mul_u32_u24 v{T1}, 1152, v{T0}")
    a(f"v_lshl_add_u32 v{T1}, v{T2}, 6, v{T1}")
    a(f"v_lshl_add_u32 v{dst}, v{T4}, 3, v{T1}")
    a(f"s_lshr_b32 s{sT0}, s{sWAVE}, 1")
    a(f"s_lshl_b32 s{sT0}, s{sT0}, 8")
    a(f"s_add_u32 s{sT0}, s{sT0}, {base}")
    a(f"v_add_u32 v{dst}, s{sT0}, v{dst}")


def afrag16_addr(a, dst, base):
    a(f"v_lshrrev_b32 v{T0}, 4, v{LANE}")
    a(f"v_bfe_u32 v{T2}, v{LANE}, 2, 2")
    a(f"v_and_b32 v{T3}, 1, v{LANE}")
    a(f"v_mul_u32_u24 v{T1}, 1152, v{T0}")
    a(f"v_lshl_add_u32 v{T1}, v{T2}, 4, v{T1}")
    a(f"v_lshl_add_u32 v{dst}, v{T3}, 3, v{T1}")
    a(f"v_add_u32 v{dst}, {base + 512}, v{dst}")


def q_full(a):
    afrag32_addr(a, VA0, 8192)
    a(f"s_and_b32 s{sT1}, s{sWAVE}, 1")
    a(f"s_lshl_b32 s{sT0}, s{sT1}, 5")
    a(f"v_and_b32 v{T1}, 31, v{LANE}")
    a(f"v_add_u32 v{T1}, s{sT0}, v{T1}")
    a(f"v_bfe_u32 v{T2}, v{T1}, 1, 3")
    a(f"v_xor_b32 v{T2}, v{T2}, v{T0}")
    a(f"v_lshlrev_b32 v{T1}, 7, v{T1}")
    for ks in range(4):
        a(f"v_xor_b32 v{T3}, {2 * ks}, v{T2}")
        a(f"v_lshl_add_u32 v{VBX + ks}, v{T3}, 4, v{T1}")
    for j in range(16):
        a(f"v_mov_b32 v{ACC + j}, 0")

    def rd(s):
        f = FR + 8 * (s % 4)
        off = (s // 4) * SLOT
        a(f"ds_read_b64_tr_b16 {vr(f, 2)}, v{VA0} offset:{off + (s % 4) * 2304}")
        a(f"ds_read_b64_tr_b16 {vr(f + 2, 2)}, v{VA0} offset:{off + (s % 4) * 2304 + 576}")
        a(f"ds_read_b128 {vr(f + 4, 4)}, v{VBX + s % 4} offset:{off}")

    def mm(s):
        f = FR + 8 * (s % 4)
        mfma16(a, ACC, f, f + 4, ACC)
    for g, (i0, i1) in enumerate(GROUPS):
        if g < 2:
            l0, l1 = a.newlabel("qa"), a.newlabel("qb")
            a(f"s_cmp_eq_u32 s{sWAVE}, s{sSUB}")
            a(f"s_cbranch_scc1 {l0}")
            a(f"s_waitcnt vmcnt({[16, 8][g]})")
            a(f"s_branch {l1}")
            a.label(l0)
            a(f"s_waitcnt vmcnt({[12, 10][g]})")
            a.label(l1)
        else:
            a("s_waitcnt vmcnt(0)")
        cnt_add(a, C_RDY + 4 * g)
        if g == 0:
            cnt_wait(a, C_KVFREE, 1)
            stream(a, 7, 2, True)
        cnt_wait(a, C_RDY + 4 * g, 4)
        pipelined(a, (i1 - i0) * 4, rd, mm)
        if g == 0:
            cnt_add(a, C_G0DONE)
        if g < 2:
            a(f"v_add_u32 v{VA0}, {(i1 - i0) * SLOT}, v{VA0}")
            for ks in range(4):
                a(f"v_add_u32 v{VBX + ks}, {(i1 - i0) * SLOT}, v{VBX + ks}")
    cnt_wait(a, C_G0DONE, 6)
    a(f"s_and_b32 s{sT0}, s{sWAVE}, 1")
    a(f"s_lshl_b32 s{sT0}, s{sT0}, 5")
    a(f"v_and_b32 v{T1}, 31, v{LANE}")
    a(f"v_add_u32 v{T1}, s{sT0}, v{T1}")
    a(f"v_mul_u32_u24 v{T1}, {QPITCH}, v{T1}")
    a(f"v_lshrrev_b32 v{T0}, 5, v{LANE}")
    a(f"v_lshl_add_u32 v{T1}, v{T0}, 3, v{T1}")
    a(f"s_lshr_b32 s{sT0}, s{sWAVE}, 1")
    a(f"s_lshl_b32 s{sT0}, s{sT0}, 6")
    a(f"s_add_u32 s{sT0}, s{sT0}, {L_QS}")
    a(f"v_add_u32 v{T1}, s{sT0}, v{T1}")
    a(f"s_mov_b32 s{sT0}, {QSCALE}")
    for j in range(16):
        a(f"v_mul_f32 v{ACC + j}, s{sT0}, v{ACC + j}")
    for i in range(8):
        a(f"v_cvt_pk_bf16_f32 v{PKD + i}, v{ACC + 2 * i}, v{ACC + 2 * i + 1}")
    for g in range(4):
        a(f"ds_write_b64 v{T1}, {vr(PKD + 2 * g, 2)} offset:{16 * g}")
    a("s_waitcnt lgkmcnt(0)")


def q_t2(a):
    afrag16_addr(a, VA0, 8192)
    a(f"s_sub_u32 s{sT0}, s{sWAVE}, 6")
    a(f"s_lshl_b32 s{sT0}, s{sT0}, 5")
    a(f"v_and_b32 v{T1}, 15, v{LANE}")
    a(f"v_add_u32 v{T1}, s{sT0}, v{T1}")
    a(f"v_bfe_u32 v{T2}, v{T1}, 1, 3")
    a(f"v_xor_b32 v{T2}, v{T2}, v{T0}")
    a(f"v_lshlrev_b32 v{T4}, 7, v{T1}")
    for h2 in range(2):
        a(f"v_xor_b32 v{T3}, {4 * h2}, v{T2}")
        a(f"v_lshl_add_u32 v{VBX + h2}, v{T3}, 4, v{T4}")
    a(f"v_mul_u32_u24 v{VBX + 2}, {QPITCH}, v{T1}")
    a(f"v_lshl_add_u32 v{VBX + 2}, v{T0}, 3, v{VBX + 2}")
    a(f"v_add_u32 v{VBX + 2}, {L_QS + 128}, v{VBX + 2}")
    for j in range(8):
        a(f"v_mov_b32 v{ACC + j}, 0")
    F = 104

    def rd(s):
        f = F + 12 * (s % 3)
        off = (s // 2) * SLOT
        a(f"ds_read_b64_tr_b16 {vr(f, 2)}, v{VA0} offset:{off + (s % 2) * 4608}")
        a(f"ds_read_b64_tr_b16 {vr(f + 2, 2)}, v{VA0} offset:{off + (s % 2) * 4608 + 576}")
        a(f"ds_read_b128 {vr(f + 4, 4)}, v{VBX + s % 2} offset:{off}")
        a(f"ds_read_b128 {vr(f + 8, 4)}, v{VBX + s % 2} offset:{off + 2048}")

    def mm(s):
        f = F + 12 * (s % 3)
        for u in range(2):
            mfma1616(a, ACC + 4 * u, f, f + 4 + 4 * u)
    cnt_wait(a, C_KVFREE, 1)
    for g, (i0, i1) in enumerate(GROUPS):
        cnt_wait(a, C_RDY + 4 * g, 4)
        pipelined(a, (i1 - i0) * 2, rd, mm, per=4, depth=2)
        if g == 0:
            cnt_add(a, C_G0DONE)
        if g < 2:
            a(f"v_add_u32 v{VA0}, {(i1 - i0) * SLOT}, v{VA0}")
            for h2 in range(2):
                a(f"v_add_u32 v{VBX + h2}, {(i1 - i0) * SLOT}, v{VBX + h2}")
    cnt_wait(a, C_G0DONE, 6)
    a(f"s_mov_b32 s{sT0}, {QSCALE}")
    for j in range(8):
        a(f"v_mul_f32 v{ACC + j}, s{sT0}, v{ACC + j}")
    for i in range(4):
        a(f"v_cvt_pk_bf16_f32 v{PKD + i}, v{ACC + 2 * i}, v{ACC + 2 * i + 1}")
    a("s_mov_b32 exec_hi, 0")
    a(f"ds_write_b64 v{VBX + 2}, {vr(PKD, 2)}")
    a(f"ds_write_b64 v{VBX + 2}, {vr(PKD + 2, 2)} offset:{16 * QPITCH}")
    a("s_mov_b32 exec_hi, -1")
    a("s_waitcnt lgkmcnt(0)")


def team_issue(a):
    a(f"s_sub_u32 s{sT2}, s{sWAVE}, 5")
    a(f"s_mul_i32 s{sT2}, s{sT2}, 3")
    set_chunk(a, idx_reg=sT2)
    a(f"s_lshl_b32 s{sT0}, s{sPB}, 2")
    a(f"s_add_u32 s{sT0}, s{sT0}, s{sSUB}")
    a(f"s_mul_i32 s{sT4}, s{sT0}, {16 * D * 2}")
    a(f"s_lshl_b32 s{sLD}, s{sT2}, 12")
    a(f"s_add_u32 s{sLD}, s{sLD}, {L_WKV}")
    a(f"s_mov_b32 s{sT3}, s{sLD}")
    a(f"v_lshlrev_b32 v{T0}, 1, v{LANE}")
    for i in range(3):
        a(f"s_add_u32 s{sN}, s{sT2}, {i}")
        a(f"s_mul_i32 s{sT0}, s{sN}, {SLOT}")
        a(f"s_lshl_b32 s{sT1}, s{sSUB}, 11")
        a(f"s_add_u32 s{sT0}, s{sT0}, s{sT1}")
        a(f"s_lshl_b32 s{sT1}, s{sN}, 11")
        a(f"s_add_u32 s{sT1}, s{sT1}, {L_XK78 - 7 * 2048}")
        a(f"s_cmp_lt_u32 s{sN}, 7")
        a(f"s_cselect_b32 s{sXB + i}, s{sT0}, s{sT1}")
        a(f"s_lshl_b32 s{sT1}, s{sCK}, 7")
        a(f"buffer_load_ushort v{GW + i}, v{T0}, {sr(SRD_GW, 4)}, s{sT1} offen")
        a(f"s_add_u32 s{sT1}, s{sT1}, s{sT4}")
        dma(a, VDX0, SRD_X, sT1, sXB + i)
        dma(a, VDX1, SRD_X, sT1, sXB + i, 1024)
        a(f"s_mul_i32 s{sT1}, s{sCK}, {64 * 36}")
        a("s_mov_b32 exec_lo, 0x77777777")
        a("s_mov_b32 exec_hi, 0x77777777")
        for p in range(4):
            dma(a, VDK, SRD_KVW, sT1, sLD)
            a(f"s_add_u32 s{sLD}, s{sLD}, 1024")
            a(f"s_add_u32 s{sT1}, s{sT1}, {16 * 36}")
        a("s_mov_b64 exec, -1")
        next_chunk(a)


def team_compute(a):
    a(f"v_lshrrev_b32 v{T0}, 4, v{LANE}")
    a(f"v_bfe_u32 v{T2}, v{LANE}, 2, 2")
    a(f"v_and_b32 v{T3}, 3, v{LANE}")
    a(f"v_lshl_add_u32 v{T1}, v{T0}, 3, v{T2}")
    a(f"v_lshlrev_b32 v{T1}, 6, v{T1}")
    a(f"v_lshl_add_u32 v{VA0}, v{T3}, 3, v{T1}")
    a(f"v_add_u32 v{VA0}, s{sT3}, v{VA0}")
    a(f"v_and_b32 v{T1}, 15, v{LANE}")
    a(f"v_lshrrev_b32 v{T2}, 1, v{T1}")
    a(f"v_xor_b32 v{T2}, v{T2}, v{T0}")
    a(f"v_lshlrev_b32 v{T4}, 7, v{T1}")
    a(f"v_lshl_add_u32 v{VXB}, v{T2}, 4, v{T4}")
    XA = PKD
    for i in range(3):
        a(f"v_add_u32 v{XA + 2 * i}, s{sXB + i}, v{VXB}")
        a(f"v_xor_b32 v{XA + 2 * i + 1}, 64, v{XA + 2 * i}")
    for j in range(8):
        a(f"v_mov_b32 v{ACC + j}, 0")
    a(f"v_lshlrev_b32 v{T0}, 6, v{LANE}")
    a(f"v_add_u32 v{T0}, s{sT3}, v{T0}")
    a("s_waitcnt vmcnt(0)")
    stamp(a, 2)
    for i in range(3):
        a(f"ds_write_b16 v{T0}, v{GW + i} offset:{4096 * i + 48}")
    F = XR
    for s in range(6):
        f = F + 12 * s
        a(f"ds_read_b128 {vr(f, 4)}, v{XA + s}")
        for nt in range(2):
            a(f"ds_read_b64_tr_b16 {vr(f + 4 + 4 * nt, 2)}, v{VA0} offset:{s * 2048 + 32 * nt}")
            a(f"ds_read_b64_tr_b16 {vr(f + 6 + 4 * nt, 2)}, v{VA0} offset:{s * 2048 + 32 * nt + 256}")
        if s in (1, 3):
            a("s_waitcnt lgkmcnt(5)")
    for kind in range(2):
        a.label(f"L_kv_{kind}")
        if kind == 0:
            a(f"s_cmp_ge_u32 s{sHQ}, 4")
            a("s_cbranch_scc1 L_kv_1")
        for s in range(6):
            f = F + 12 * s
            if s >= 3:
                a(f"s_waitcnt lgkmcnt({5 * (5 - s)})")
            for nt in range(2):
                w = f + 4 + 4 * nt
                pa, pb = (w, f) if kind == 0 else (f, w)
                mfma1616(a, ACC + 4 * nt, pa, pb)
        if kind == 0:
            a("s_branch L_kv_j")
    a.label("L_kv_j")
    a(f"v_add_u32 v{T0}, s{sT3}, v{L16}")
    a("s_nop 6")
    a(f"s_cmp_eq_u32 s{sWAVE}, 5")
    a("s_cbranch_scc1 L_kv_fin")
    a(f"ds_write_b128 v{T0}, {vr(ACC, 4)}")
    a(f"ds_write_b128 v{T0}, {vr(ACC + 4, 4)} offset:1024")
    a("s_waitcnt lgkmcnt(0)")
    cnt_add(a, C_TEAM)
    a("s_setprio 0")
    a("s_branch L_q_t2")
    a.label("L_kv_fin")
    a(f"s_lshl_b32 s{sT3}, s{sPB}, 1")
    a(f"s_lshr_b32 s{sT0}, s{sSUB}, 1")
    a(f"s_add_u32 s{sT3}, s{sT3}, s{sT0}")
    a(f"s_lshr_b32 s{sT1}, s{sT3}, 3")
    a(f"s_mul_i32 s{sT1}, s{sT1}, {STAGE}")
    a(f"s_add_u32 s{sT1}, s{sT1}, {WS_KV}")
    a(f"s_and_b32 s{sT0}, s{sT3}, 7")
    a(f"s_and_b32 s{sT4}, s{sSUB}, 1")
    cnt_wait(a, C_TEAM, 2)
    for j in range(2):
        for nt in range(2):
            a(f"ds_read_b128 {vr(FR + 8 * j + 4 * nt, 4)}, v{T0} offset:{12288 * (j + 1) + 1024 * nt}")
    a(f"v_and_b32 v{T0}, 15, v{LANE}")
    a(f"v_bfe_u32 v{T1}, v{LANE}, 4, 1")
    a(f"v_lshrrev_b32 v{T2}, 5, v{LANE}")
    a("s_waitcnt lgkmcnt(0)")
    cnt_add(a, C_KVFREE)
    for j in range(8):
        a(f"v_add_f32 v{ACC + j}, v{ACC + j}, v{FR + j}")
    for j in range(8):
        a(f"v_add_f32 v{ACC + j}, v{ACC + j}, v{FR + 8 + j}")
    for i in range(4):
        a(f"v_cvt_pk_bf16_f32 v{PKD + i}, v{ACC + 2 * i}, v{ACC + 2 * i + 1}")
    a(f"s_cmp_ge_u32 s{sHQ}, 4")
    a("s_cbranch_scc1 L_st_v")
    a(f"v_lshlrev_b32 v{T3}, 4, v{T0}")
    a(f"v_lshl_add_u32 v{T3}, v{T2}, 9, v{T3}")
    a(f"v_lshl_add_u32 v{T3}, v{T1}, 3, v{T3}")
    a(f"s_lshl_b32 s{sT2}, s{sT0}, 10")
    a(f"s_add_u32 s{sT2}, s{sT2}, s{sT1}")
    a(f"s_lshl_b32 s{sN}, s{sT4}, 8")
    a(f"s_add_u32 s{sT2}, s{sT2}, s{sN}")
    a(f"buffer_store_dwordx2 {vr(PKD, 2)}, v{T3}, {sr(SRD_WS, 4)}, s{sT2} offen sc1")
    a(f"s_lshr_b32 s{sT2}, s{sT0}, 1")
    a(f"s_lshl_b32 s{sT2}, s{sT2}, 8")
    a(f"s_and_b32 s{sT0}, s{sT0}, 1")
    a(f"s_lshl_b32 s{sT0}, s{sT0}, 2")
    a(f"s_add_u32 s{sT2}, s{sT2}, s{sT0}")
    a(f"s_add_u32 s{sT2}, s{sT2}, s{sT1}")
    a(f"s_lshl_b32 s{sN}, s{sT4}, 7")
    a(f"s_add_u32 s{sT2}, s{sT2}, s{sN}")
    a(f"s_add_u32 s{sT2}, s{sT2}, {K2_OFF_IN_STAGE}")
    a("s_mov_b32 exec_lo, 0xffff")
    a("s_mov_b32 exec_hi, 0")
    a(f"buffer_store_dword v{PKD + 2}, v{L8}, {sr(SRD_WS, 4)}, s{sT2} offen sc1")
    a("s_mov_b32 exec_lo, 0")
    a("s_mov_b32 exec_hi, 0xffff")
    a(f"v_lshlrev_b32 v{T3}, 16, v{PKD + 2}")
    a(f"v_mul_f32 v{T3}, {f32bits(-math.log2(math.e))}, v{T3}")
    a(f"v_exp_f32 v{T3}, v{T3}")
    a("s_nop 0")
    a(f"v_add_f32 v{T3}, 1.0, v{T3}")
    a(f"v_rcp_f32 v{T3}, v{T3}")
    a("s_nop 0")
    a(f"v_cvt_pk_bf16_f32 v{T3}, v{T3}, v{T3}")
    a(f"v_and_b32 v{T3}, 0xffff0000, v{T3}")
    a(f"v_lshlrev_b32 v{T4}, 2, v{T0}")
    a(f"s_lshl_b32 s{sT2}, s{sT3}, 7")
    a(f"s_lshl_b32 s{sN}, s{sT4}, 6")
    a(f"s_add_u32 s{sT2}, s{sT2}, s{sN}")
    a(f"s_add_u32 s{sT2}, s{sT2}, {WS_G}")
    a(f"buffer_store_dword v{T3}, v{T4}, {sr(SRD_WS, 4)}, s{sT2} offen sc1")
    a("s_mov_b64 exec, -1")
    a("s_branch L_kv_pub")
    a.label("L_st_v")
    a(f"v_cmp_eq_u32 vcc, 2, v{T0}")
    a(f"v_mov_b32 v{T3}, 0x3f803f80")
    a("s_nop 0")
    for i in range(2):
        a(f"v_cndmask_b32 v{PKD + 2 + i}, v{PKD + 2 + i}, v{T3}, vcc")
    a(f"v_cmp_eq_u32 vcc, 3, v{T0}")
    a("s_nop 1")
    for i in range(2):
        a(f"v_cndmask_b32 v{PKD + 2 + i}, v{PKD + 2 + i}, 0, vcc")
    a(f"v_mul_u32_u24 v{T1}, 320, v{T1}")
    a(f"v_lshl_add_u32 v{T1}, v{T0}, 4, v{T1}")
    a(f"v_lshl_add_u32 v{T1}, v{T2}, 3, v{T1}")
    a(f"s_lshl_b32 s{sT0}, s{sT0}, 1")
    a(f"s_add_u32 s{sT0}, s{sT0}, s{sT4}")
    a(f"s_mul_i32 s{sT0}, s{sT0}, {VGRP}")
    a(f"s_add_u32 s{sT0}, s{sT0}, s{sT1}")
    a(f"s_add_u32 s{sT0}, s{sT0}, {V_OFF_IN_STAGE}")
    a(f"buffer_store_dwordx2 {vr(PKD, 2)}, v{T1}, {sr(SRD_WS, 4)}, s{sT0} offen sc1")
    a("s_mov_b32 exec_lo, 0x000f000f")
    a("s_mov_b32 exec_hi, 0x000f000f")
    a(f"buffer_store_dwordx2 {vr(PKD + 2, 2)}, v{T1}, {sr(SRD_WS, 4)}, s{sT0} offen offset:256 sc1")
    a("s_mov_b64 exec, -1")
    a.label("L_kv_pub")
    get_tag(a)
    a(f"s_lshl_b32 s{sT3}, s{sPB}, 3")
    a(f"s_add_u32 s{sT3}, s{sT3}, s{sHQ}")
    a(f"s_lshl_b32 s{sT3}, s{sT3}, 4")
    a(f"s_add_u32 s{sT3}, s{sT3}, {WS_FLAG}")
    a("s_waitcnt vmcnt(0)")
    put_flag(a, sT3)
    stamp(a, 3)
    a("s_setprio 0")


def set_bases(a):
    a(f"v_add_u32 v{VK}, s{sCUR}, v{L16}")
    a(f"v_add_u32 v{VK2}, s{sCUR}, v{L8}")
    a(f"v_add_u32 v{VV}, s{sCUR}, v{VSL}")
    a(f"v_add_u32 v{VKN}, s{sNXT}, v{L16}")
    a(f"v_add_u32 v{VK2N}, s{sNXT}, v{L8}")
    a(f"v_add_u32 v{VVN}, s{sNXT}, v{VSL}")


def rd_k1(a, tile):
    if tile < 8:
        a(f"ds_read_b128 {vr(K1F, 4)}, v{VK} offset:{tile * 1024}")
    else:
        a(f"ds_read_b128 {vr(K1F, 4)}, v{VKN} offset:{(tile - 8) * 1024}")


def rd_k2(a, beta, nxt):
    a(f"ds_read_b64 {vr(K2F + 2 * beta, 2)}, v{VK2N if nxt else VK2} offset:{K2_OFF_IN_STAGE + beta * 512}")


def rd_v(a, tile, g):
    dst = VA if g == 0 else VB
    if tile < 8:
        a(f"ds_read_b128 {vr(dst, 4)}, v{VV} offset:{V_OFF_IN_STAGE + (tile * 2 + g) * VGRP}")
    else:
        a(f"ds_read_b128 {vr(dst, 4)}, v{VVN} offset:{V_OFF_IN_STAGE + ((tile - 8) * 2 + g) * VGRP}")


def tile_max(a, s, acc):
    a(f"v_max3_f32 v{acc}, v{s}, v{s + 1}, v{s + 2}")
    a(f"v_max_f32 v{acc}, v{acc}, v{s + 3}")
    for j in range(4, 16, 2):
        a(f"v_max3_f32 v{acc}, v{acc}, v{s + j}, v{s + j + 1}")


def cross_half_max(a, x, tmp):
    a(f"v_mov_b32 v{tmp}, v{x}")
    a("s_nop 1")
    a(f"v_permlane32_swap_b32 v{x}, v{tmp}")
    a("s_nop 1")
    a(f"v_max_f32 v{x}, v{x}, v{tmp}")


def dma_slot(a):
    lab = a.newlabel("ds")
    a(f"s_cmp_eq_u32 s{sREM}, 0")
    a(f"s_cbranch_scc1 {lab}")
    a(f"s_mov_b32 m0, s{sL}")
    a(f"s_sub_u32 s{sREM}, s{sREM}, 1")
    a(f"buffer_load_dwordx4 v{VDMA}, {sr(SRD_DMA, 4)}, s{sG} offen sc1 lds")
    a(f"s_add_u32 s{sL}, s{sL}, s{sLSTEP}")
    a(f"s_add_u32 s{sG}, s{sG}, s{sGSTEP}")
    a.label(lab)


SITE_A, SITE_B = 4, 10


def halfstep(a, h):
    t, r = divmod(h, 2)
    tn, rn = divmod(h + 1, 2)
    rp = (h - 1) % 2
    S, Sn = SB[h % 2], SB[(h + 1) % 2]
    first, last = r == 0, r == 1
    if h == SITE_A:
        a(f"s_bitcmp1_b32 {9 if BRANCH_B else 8}, s{sSTAGE}")
        a("s_cbranch_scc1 L_siteA")
        a.label("L_siteA_back")
    if h == SITE_B:
        a(f"s_cmp_lt_u32 s{sSTAGE}, {3 if BRANCH_B else 2}")
        a("s_cbranch_scc1 L_siteB")
        a.label("L_siteB_back")
    if PRIOG and h % PRIOG == 0:
        a(f"s_setprio {3 - (h // PRIOG) % 4}")
    cnt = None
    for tok in ORDER.split():
        n0 = len(a.lines)
        if tok[0] == "e":
            j = int(tok[1:])
            a(f"v_exp_f32 v{S + j}, v{S + j}")
        elif tok[0] == "c":
            j = int(tok[1:])
            a(f"v_cvt_pk_bf16_f32 v{P + j}, v{S + 2 * j}, v{S + 2 * j + 1}")
        elif tok == "PVb":
            if rp == 0:
                a("s_waitcnt lgkmcnt(1)")
            mfma16(a, O[rp], VB, P + 4, O[rp])
            if first:
                rd_v(a, t, 1)
        elif tok == "M1":
            if rn == 0:
                a("s_waitcnt lgkmcnt(0)")
            mfma16(a, Sn, K1F, Q1[rn], NEGM[rn])
            if rn == 1:
                rd_k1(a, tn + 1)
                if tn + 1 == 7:
                    rd_k2(a, 0, True)
                if tn + 1 == 1:
                    rd_k2(a, 1, False)
            dma_slot(a)
        elif tok == "M2":
            tq = tn % 8
            mfma8(a, Sn, K2F + 2 * (tq // 4), QV[rn] + 2 * (tq % 4), Sn)
            cnt = 0
            continue
        elif tok == "PVa":
            if first:
                a("s_waitcnt lgkmcnt(2)")
            mfma16(a, O[r], VA, P, O[r])
            if last:
                rd_v(a, t + 1, 0)
        if cnt is not None:
            cnt += len(a.lines) - n0
    if cnt < 12:
        a(f"s_nop {12 - cnt - 1}")


def fallback(a):
    a.comment("fallback: online softmax with the running row max, K/V read from the workspace image")
    M = [T2, T3]
    for r in range(2):
        a(f"v_mov_b32 v{M[r]}, 0xff7fffff")
        for j in range(16):
            a(f"v_mov_b32 v{O[r] + j}, 0")
    a(f"v_and_b32 v{VK2}, 31, v{LANE}")
    a(f"v_lshlrev_b32 v{VK2}, 3, v{VK2}")
    a(f"v_mov_b32 v{K2F + 1}, 0")
    a(f"s_mov_b32 s{sI}, 0")
    a.label("L_fb_loop")
    a(f"s_lshr_b32 s{sT0}, s{sI}, 3")
    a(f"s_lshl_b32 s{sT0}, s{sT0}, 1")
    a(f"s_add_u32 s{sT0}, s{sT0}, s{sKH}")
    a(f"s_mul_i32 s{sT0}, s{sT0}, {STAGE}")
    a(f"s_add_u32 s{sT0}, s{sT0}, {WS_KV}")
    a(f"s_and_b32 s{sT1}, s{sI}, 7")
    a(f"s_lshl_b32 s{sT2}, s{sT1}, 10")
    a(f"s_add_u32 s{sT2}, s{sT2}, s{sT0}")
    a(f"buffer_load_dwordx4 {vr(K1F, 4)}, v{L16}, {sr(SRD_WS, 4)}, s{sT2} offen sc1")
    a(f"s_lshr_b32 s{sT2}, s{sT1}, 1")
    a(f"s_lshl_b32 s{sT2}, s{sT2}, 8")
    a(f"s_and_b32 s{sT3}, s{sT1}, 1")
    a(f"s_lshl_b32 s{sT3}, s{sT3}, 2")
    a(f"s_add_u32 s{sT2}, s{sT2}, s{sT3}")
    a(f"s_add_u32 s{sT2}, s{sT2}, s{sT0}")
    a(f"s_add_u32 s{sT2}, s{sT2}, {K2_OFF_IN_STAGE}")
    a(f"buffer_load_dword v{K2F}, v{VK2}, {sr(SRD_WS, 4)}, s{sT2} offen sc1")
    a(f"s_mul_i32 s{sT2}, s{sT1}, {2 * VGRP}")
    a(f"s_add_u32 s{sT2}, s{sT2}, s{sT0}")
    a(f"s_add_u32 s{sT2}, s{sT2}, {V_OFF_IN_STAGE}")
    a(f"buffer_load_dwordx4 {vr(VA, 4)}, v{VSL}, {sr(SRD_WS, 4)}, s{sT2} offen sc1")
    a(f"buffer_load_dwordx4 {vr(VB, 4)}, v{VSL}, {sr(SRD_WS, 4)}, s{sT2} offen offset:{VGRP} sc1")
    a("s_waitcnt vmcnt(0)")
    for r in range(2):
        mfma16(a, SB[r], K1F, Q1[r], None)
        mfma8(a, SB[r], K2F, QV[r], SB[r])
    a("s_nop 15")
    for r in range(2):
        S = SB[r]
        tile_max(a, S, T0)
        cross_half_max(a, T0, T1)
        a(f"v_max_f32 v{T0}, v{T0}, v{M[r]}")
        a(f"v_sub_f32 v{T1}, v{M[r]}, v{T0}")
        a(f"v_exp_f32 v{T1}, v{T1}")
        a(f"v_mov_b32 v{M[r]}, v{T0}")
        for j in range(16):
            a(f"v_mul_f32 v{O[r] + j}, v{O[r] + j}, v{T1}")
        for j in range(16):
            a(f"v_sub_f32 v{S + j}, v{S + j}, v{T0}")
        for j in range(16):
            a(f"v_exp_f32 v{S + j}, v{S + j}")
        a("s_nop 0")
        for j in range(8):
            a(f"v_cvt_pk_bf16_f32 v{P + j}, v{S + 2 * j}, v{S + 2 * j + 1}")
        a("s_nop 1")
        mfma16(a, O[r], VA, P, O[r])
        mfma16(a, O[r], VB, P + 4, O[r])
    a("s_nop 15")
    a(f"s_add_u32 s{sI}, s{sI}, 1")
    a(f"s_cmp_lt_u32 s{sI}, 32")
    a("s_cbranch_scc1 L_fb_loop")
    for r in range(2):
        a(f"v_sub_f32 v{NEGM[r]}, 0, v{M[r]}")
        a(f"v_cndmask_b32 v{O[r] + 10}, v{O[r] + 10}, v{O[r] + 14}, {sr(sHALF, 2)}")
    a("s_branch L_attn_ok")


def attention(a):
    for r in range(2):
        q = QV[r]
        a(f"v_mov_b32 v{T4}, v{q + 1}")
        for j in (1, 2, 5, 6):
            a(f"v_mov_b32 v{q + j}, 0")
        a(f"v_cndmask_b32 v{q + 0}, v{T4}, 0, {sr(sHALF, 2)}")
        a(f"v_cndmask_b32 v{q + 3}, v{T4}, 0, {sr(sHALF, 2)}")
        a(f"v_cndmask_b32 v{q + 4}, 0, v{T4}, {sr(sHALF, 2)}")
        a(f"v_cndmask_b32 v{q + 7}, 0, v{T4}, {sr(sHALF, 2)}")
        for j in range(16):
            a(f"v_mov_b32 v{O[r] + j}, 0")
    for j in range(4):
        a(f"v_mov_b32 v{P + 4 + j}, 0")
        a(f"v_mov_b32 v{VB + j}, 0")
    a(f"s_mov_b32 s{sSTAGE}, 0")
    a(f"s_mul_i32 s{sCUR}, s{sKH}, {STAGE}")
    a(f"s_add_u32 s{sNXT}, s{sCUR}, {PAIR}")
    set_bases(a)
    a("s_waitcnt vmcnt(0)")
    a("s_barrier")
    stamp(a, 1)
    if BRANCH_B:
        lab = a.newlabel("nkp")
        a(f"s_cmp_lt_u32 s{sWAVE}, 5")
        a(f"s_cbranch_scc1 {lab}")
        kvprep_loads(a)
        a.label(lab)
    rd_k1(a, 0)
    rd_k2(a, 0, False)
    rd_k2(a, 1, False)
    rd_v(a, 0, 0)
    a("s_waitcnt lgkmcnt(2)")
    for r in range(2):
        mfma16(a, SB[r], K1F, Q1[r], None)
        mfma8(a, SB[r], K2F, QV[r], SB[r])
    a("s_nop 9")
    for r in range(2):
        tile_max(a, SB[r], T0 + 2 * r)
    for r in range(2):
        a(f"v_mov_b32 v{T1 + 2 * r}, v{T0 + 2 * r}")
    a("s_nop 0")
    for r in range(2):
        a(f"v_permlane32_swap_b32 v{T0 + 2 * r}, v{T1 + 2 * r}")
    a("s_nop 0")
    for r in range(2):
        a(f"v_max_f32 v{T0 + 2 * r}, v{T0 + 2 * r}, v{T1 + 2 * r}")
    for r in range(2):
        for j in range(16):
            a(f"v_sub_f32 v{NEGM[r] + j}, 0, v{T0 + 2 * r}")
    for j in range(16):
        a(f"v_sub_f32 v{SB[0] + j}, v{SB[0] + j}, v{T0}")
    a.lines.append(".p2align 3")
    a.label("L_attn_loop")
    for h in range(16):
        halfstep(a, h)
    a(f"s_add_u32 s{sSTAGE}, s{sSTAGE}, 1")
    a(f"s_mov_b32 s{sCUR}, s{sNXT}")
    a(f"s_add_u32 s{sNXT}, s{sNXT}, {PAIR}")
    a(f"s_cmp_ge_u32 s{sNXT}, {KV_BYTES}")
    a(f"s_cselect_b32 s{sNXT}, s{sCUR}, s{sNXT}")
    set_bases(a)
    a(f"s_bitcmp1_b32 {12 if BRANCH_B else 8}, s{sSTAGE}")
    a("s_cbranch_scc1 L_enter3")
    a.label("L_enter3_back")
    a(f"s_cmp_lt_u32 s{sSTAGE}, 4")
    a("s_cbranch_scc1 L_attn_loop")
    a("s_setprio 0")
    a("s_waitcnt lgkmcnt(0)")
    mfma16(a, O[1], VB, P + 4, O[1])
    a(f"s_mov_b32 s{sT0}, 0x4e800000")
    a("s_nop 12")
    for r in range(2):
        a(f"v_cndmask_b32 v{O[r] + 10}, v{O[r] + 10}, v{O[r] + 14}, {sr(sHALF, 2)}")
    a(f"v_add_f32 v{T0}, v{O[0] + 10}, v{O[1] + 10}")
    a(f"v_cmp_ngt_f32 vcc, s{sT0}, v{T0}")
    a("s_nop 4")
    a("s_cbranch_vccnz L_fallback")
    a.label("L_attn_ok")


def out_of_line(a):
    a.label("L_enter3")
    a("s_waitcnt lgkmcnt(0)")
    if BRANCH_B:
        l3, lr, lx = a.newlabel("e3"), a.newlabel("er"), a.newlabel("ex")
        a(f"s_cmp_eq_u32 s{sSTAGE}, 3")
        a(f"s_cbranch_scc1 {l3}")
        cnt_add(a, C_S2)
        a.label(l3)
        a(f"s_add_u32 s{sT0}, s{sKH}, 2")
        a(f"s_cmp_lg_u32 s{sT0}, s{sSTAGE}")
        a(f"s_cbranch_scc1 {lx}")
        conv_run(a)
        a.label(lx)
        a(f"s_cmp_lg_u32 s{sSTAGE}, 3")
        a(f"s_cbranch_scc1 {lr}")
        cnt_add(a, C_S3)
        a.label(lr)
    else:
        cnt_add(a, C_S3)
    a("s_waitcnt lgkmcnt(0)")
    a("s_branch L_enter3_back")
    a.label("L_siteB")
    l0, l2, lp = a.newlabel("sb1"), a.newlabel("sb2"), a.newlabel("sbp")
    a(f"s_cmp_eq_u32 s{sSTAGE}, 1")
    a(f"s_cbranch_scc1 {l0}")
    a(f"s_cmp_eq_u32 s{sSTAGE}, 2")
    a(f"s_cbranch_scc1 {l2}")
    a("s_waitcnt vmcnt(5)")
    a("s_barrier")
    if BRANCH_B:
        a(f"s_cmp_lg_u32 s{sWAVE}, 4")
        a("s_cbranch_scc1 L_siteB_back")
        a(f"s_lshl_b32 s{sT1}, s{sHQ}, 5")
        a(f"s_add_u32 s{sT1}, s{sT1}, s{sPB}")
        a(f"s_lshl_b32 s{sT1}, s{sT1}, 4")
        a(f"s_add_u32 s{sT1}, s{sT1}, {WS_UFLAG}")
        put_flag(a, sT1)
    a("s_branch L_siteB_back")
    a.label(l0)
    a("s_waitcnt vmcnt(0)")
    a("s_barrier")
    if BRANCH_B:
        a(f"s_cmp_eq_u32 s{sKH}, 0")
        a(f"s_cbranch_scc1 {lp}")
    a("s_branch L_siteB_back")
    a.label(l2)
    if BRANCH_B:
        a(f"s_cmp_eq_u32 s{sKH}, 0")
        a("s_cbranch_scc1 L_siteB_back")
        cnt_wait(a, C_S2, 8)
        a.label(lp)
        conv_prep(a)
    a("s_branch L_siteB_back")
    a.label("L_siteA")
    if BRANCH_B:
        l3 = a.newlabel("sa3")
        a(f"s_cmp_eq_u32 s{sSTAGE}, 3")
        a(f"s_cbranch_scc1 {l3}")
        a(f"s_cmp_lt_u32 s{sWAVE}, 5")
        a("s_cbranch_scc1 L_siteA_back")
        a(f"s_waitcnt vmcnt({SITE_A})")
        kvprep_compute(a)
        a("s_branch L_siteA_back")
        a.label(l3)
    cnt_wait(a, C_S3, 8)
    for i in range(4):
        a(f"s_mov_b32 s{SRD_DMA + i}, s{SRD_WO + i}")
    a(f"v_mov_b32 v{VDMA}, v{VWO}")
    a(f"s_mov_b32 s{sG}, s{sWG}")
    a(f"s_mov_b32 s{sGSTEP}, {4 * 18 * D * 2}")
    a(f"s_lshl_b32 s{sL}, s{sWAVE}, 10")
    a(f"s_mov_b32 s{sLSTEP}, 9216")
    a(f"s_mov_b32 s{sREM}, 8")
    a(f"s_mul_i32 s{sT1}, s{sWAVE}, {4 * 18 * D * 2}")
    a(f"s_add_u32 s{sT1}, s{sT1}, s{sWG}")
    a(f"s_mul_i32 s{sT2}, s{sWAVE}, 9216")
    dma(a, VWOE, SRD_WO, sT1, sT2, 8192)
    dma(a, VWOL, SRD_WO, sWG, sL, 8 * 9216)
    a("s_branch L_siteA_back")
    a.label("L_fallback")
    fallback(a)


KR, VR, SKR = XR, XR + 22, XR + 38
WIN, TAP, UU = XR + 46, XR + 54, XR + 62
VUS = XR + 66
JREG = 9728
J_E, J_O, J_H = 0, 2112, 4224


def kvprep_loads(a):
    srd(a, SRD_J, sBP, sBP + 1, S * D * 2)
    a(f"v_mul_u32_u24 v{T0}, 10923, v{LANE}")
    a(f"v_lshrrev_b32 v{T0}, 16, v{T0}")
    a(f"v_mul_u32_u24 v{T1}, 6, v{T0}")
    a(f"v_sub_u32 v{T1}, v{LANE}, v{T1}")
    a(f"s_sub_u32 s{sT0}, s{sWAVE}, 5")
    a(f"s_mul_i32 s{sT0}, s{sT0}, 24")
    a(f"s_mul_i32 s{sT1}, s{sHQ}, 72")
    a(f"s_add_u32 s{sT0}, s{sT0}, s{sT1}")
    a(f"v_lshl_add_u32 v{T1}, v{T1}, 2, s{sT0}")
    a(f"s_lshl_b32 s{sT1}, s{sPB}, 6")
    a(f"v_lshl_add_u32 v{T0}, v{T0}, 3, s{sT1}")
    a(f"v_mul_u32_u24 v{VUS}, {UP2}, v{T1}")
    a(f"v_lshlrev_b32 v{T2}, 1, v{T0}")
    a(f"v_sub_u32 v{VUS}, v{VUS}, v{T2}")
    a(f"v_add_u32 v{VUS}, {WS_U + 2 * 2040}, v{VUS}")
    a(f"v_mul_u32_u24 v{T2}, {D * 2}, v{T0}")
    a(f"v_lshl_add_u32 v{T2}, v{T1}, 1, v{T2}")
    a(f"v_subrev_u32 v{T3}, {3 * D * 2}, v{T2}")
    a(f"v_add_u32 v{T4}, {4 * D * 2}, v{T2}")
    a(f"v_lshlrev_b32 v{T1}, 3, v{T1}")
    a("s_mov_b32 exec_hi, 0xffff")
    for r in range(11):
        base, rr = (T3, r) if r < 3 else ((T2, r - 3) if r < 7 else (T4, r - 7))
        a(f"buffer_load_dwordx2 {vr(KR + 2 * r, 2)}, v{base}, {sr(SRD_J, 4)}, 0 offen offset:{rr * D * 2}")
    srd(a, SRD_J, sBP + 2, sBP + 3, S * D * 2)
    for r in range(8):
        base, rr = (T2, r) if r < 4 else (T4, r - 4)
        a(f"buffer_load_dwordx2 {vr(VR + 2 * r, 2)}, v{base}, {sr(SRD_J, 4)}, 0 offen offset:{rr * D * 2}")
    srd(a, SRD_J, sBP + 4, sBP + 5, D * 8)
    a(f"buffer_load_dwordx4 {vr(SKR, 4)}, v{T1}, {sr(SRD_J, 4)}, 0 offen")
    a(f"buffer_load_dwordx4 {vr(SKR + 4, 4)}, v{T1}, {sr(SRD_J, 4)}, 0 offen offset:16")
    a("s_mov_b32 exec_hi, -1")


def kvprep_compute(a):
    a("s_mov_b32 exec_hi, 0xffff")
    a(f"s_mov_b32 s{sT3}, 0xffff0000")
    PKO = PL
    for cp in range(2):
        for e in range(2):
            c = 2 * cp + e
            a(f"v_lshlrev_b32 v{TAP + 0 + e}, 16, v{SKR + 2 * c}")
            a(f"v_and_b32 v{TAP + 2 + e}, s{sT3}, v{SKR + 2 * c}")
            a(f"v_lshlrev_b32 v{TAP + 4 + e}, 16, v{SKR + 2 * c + 1}")
            a(f"v_and_b32 v{TAP + 6 + e}, s{sT3}, v{SKR + 2 * c + 1}")

        def unpack(r):
            w = WIN + 2 * (r % 4)
            a(f"v_lshlrev_b32 v{w}, 16, v{KR + 2 * r + cp}")
            a(f"v_and_b32 v{w + 1}, s{sT3}, v{KR + 2 * r + cp}")
        for r in range(3):
            unpack(r)
        for p in range(8):
            unpack(p + 3)
            u = UU + 2 * (p % 2)
            a(f"v_pk_mul_f32 {vr(u, 2)}, {vr(WIN + 2 * ((p + 3) % 4), 2)}, {vr(TAP, 2)}")
            for j in range(1, 4):
                a(f"v_pk_fma_f32 {vr(u, 2)}, {vr(WIN + 2 * ((p + 3 - j) % 4), 2)}, {vr(TAP + 2 * j, 2)}, {vr(u, 2)}")
            a(f"v_lshlrev_b32 v{T1}, 16, v{VR + 2 * p + cp}")
            a(f"v_and_b32 v{T2}, s{sT3}, v{VR + 2 * p + cp}")
            a(f"v_pk_mul_f32 {vr(u, 2)}, {vr(u, 2)}, {vr(T1, 2)}")
            if p % 2 == 1:
                for e in range(2):
                    a(f"v_cvt_pk_bf16_f32 v{PKO + 4 * e + (7 - p) // 2}, v{UU + 2 + e}, v{UU + e}")
        for e in range(2):
            a(f"s_mov_b32 s{sT0}, {(2 * cp + e) * UP2}")
            a(f"buffer_store_dwordx4 {vr(PKO + 4 * e, 4)}, v{VUS}, {sr(SRD_WS, 4)}, s{sT0} offen sc1")
    lab = a.newlabel("nopad")
    a(f"s_cmp_lg_u32 s{sPB}, 0")
    a(f"s_cbranch_scc1 {lab}")
    for i in range(4):
        a(f"v_mov_b32 v{WIN + i}, 0")
    a("s_mov_b64 exec, 0x3f")
    for c in range(4):
        a(f"s_mov_b32 s{sT0}, {c * UP2}")
        a(f"buffer_store_dwordx4 {vr(WIN, 4)}, v{VUS}, {sr(SRD_WS, 4)}, s{sT0} offen offset:16 sc1")
    a.label(lab)
    a("s_mov_b64 exec, -1")


def job_assign(a):
    a(f"s_and_b32 s{sT0}, s{sWAVE}, 1")
    a(f"s_add_u32 s{sJOB}, s{sT0}, 1")
    a(f"s_lshl_b32 s{sT1}, s{sKH}, 8")
    a(f"s_add_u32 s{sCH}, s{sT1}, s2")
    l1, l2 = a.newlabel("ja"), a.newlabel("jb")
    a(f"s_bitcmp0_b32 s{sWAVE}, 1")
    a(f"s_cbranch_scc1 {l2}")
    a("s_cmp_lt_u32 s2, 64")
    a(f"s_cbranch_scc0 {l1}")
    a(f"s_add_u32 s{sCH}, s2, 512")
    a(f"s_cmp_eq_u32 s{sKH}, 0")
    a(f"s_cselect_b32 s{sJOB}, s{sJOB}, 3")
    a(f"s_branch {l2}")
    a.label(l1)
    a(f"s_sub_u32 s{sCH}, s2, 64")
    a(f"s_mul_i32 s{sCH}, s{sCH}, 3")
    a(f"s_lshl_b32 s{sT1}, s{sKH}, 1")
    a(f"s_add_u32 s{sT0}, s{sT0}, s{sT1}")
    a(f"s_add_u32 s{sCH}, s{sCH}, s{sT0}")
    a(f"s_cmp_eq_u32 s{sT0}, 3")
    a(f"s_cselect_b32 s{sJOB}, 3, 0")
    a.label(l2)


CACC, CF, CVA, CVB, CVD = XR, XR + 16, XR + 48, XR + 49, XR + 50


def conv_prep(a):
    lab = a.newlabel("cpn")
    a(f"s_cmp_eq_u32 s{sJOB}, 3")
    a(f"s_cbranch_scc1 {lab}")
    get_tag(a)
    a(f"s_mul_i32 s{sT3}, s{sCH}, 911")
    a(f"s_lshr_b32 s{sT3}, s{sT3}, 16")
    a(f"s_lshl_b32 s{sT3}, s{sT3}, 9")
    a(f"s_add_u32 s{sT3}, s{sT3}, {WS_UFLAG}")
    a(f"v_and_b32 v{T0}, 31, v{LANE}")
    a(f"v_lshlrev_b32 v{T0}, 4, v{T0}")
    poll_flags(a, sT3, T0, 1)
    a(f"s_mul_i32 s{sLD}, s{sWAVE}, {JREG}")
    a(f"s_mul_i32 s{sT1}, s{sCH}, {UP2}")
    a(f"s_add_u32 s{sT1}, s{sT1}, {WS_U}")
    a(f"s_add_u32 s{sT1}, s{sWS}, s{sT1}")
    a(f"s_addc_u32 s{sT2}, s{sWS + 1}, 0")
    srd(a, SRD_J, sT1, sT2, UP2)
    a(f"s_cmp_eq_u32 s{sJOB}, 2")
    a(f"s_cselect_b32 s{sT1}, 0, 2048")
    for cpy in range(2):
        for i in range(3):
            if i == 2:
                a("s_mov_b64 exec, 0xf")
            a(f"s_add_u32 s{sT2}, s{sT1}, {1024 * i + 2 * cpy}")
            dma(a, L16, SRD_J, sT2, sLD, cpy * J_O + 1024 * i + (0 if cpy or i else 0), sc1=True)
            if i == 2:
                a("s_mov_b64 exec, -1")
    a(f"s_lshl_b32 s{sT1}, s{sCH}, 12")
    a(f"s_add_u32 s{sT1}, s{sBP + 6}, s{sT1}")
    a(f"s_addc_u32 s{sT2}, s{sBP + 7}, 0")
    srd(a, SRD_J, sT1, sT2, 4096)
    a(f"s_cmp_eq_u32 s{sJOB}, 1")
    a(f"s_cselect_b32 s{sT1}, 0, {(-2048) & 0xffffffff}")
    a(f"s_mov_b32 s{sT2}, 0")
    for i in range(5):
        a(f"v_add_u32 v{T0}, {64 * i}, v{LANE}")
        a(f"v_mul_u32_u24 v{T1}, 13108, v{T0}")
        a(f"v_lshrrev_b32 v{T1}, 16, v{T1}")
        a(f"v_sub_u32 v{T0}, v{T0}, v{T1}")
        a(f"v_lshl_add_u32 v{T0}, v{T0}, 4, s{sT1}")
        dma(a, T0, SRD_J, sT2, sLD, J_H + 1024 * i)
    srd(a, SRD_J, sDP, sDP + 1, D * 2)
    a(f"s_lshl_b32 s{sT1}, s{sCH}, 1")
    a(f"v_mov_b32 v{T0}, 0")
    a(f"buffer_load_ushort v{CVD}, v{T0}, {sr(SRD_J, 4)}, s{sT1} offen")
    a.label(lab)


def conv_run(a):
    end = a.newlabel("crn")
    a(f"s_cmp_eq_u32 s{sJOB}, 3")
    a(f"s_cbranch_scc1 {end}")
    a(f"s_mul_i32 s{sLD}, s{sWAVE}, {JREG}")
    a(f"v_and_b32 v{T0}, 31, v{LANE}")
    a(f"v_lshrrev_b32 v{T1}, 5, v{LANE}")
    a(f"v_or_b32 v{T2}, 1, v{T0}")
    a(f"v_lshlrev_b32 v{T2}, 1, v{T2}")
    a(f"v_lshl_add_u32 v{T2}, v{T1}, 4, v{T2}")
    a(f"s_add_u32 s{sT0}, s{sLD}, {2 * 1047 - 32 * 15}")
    a(f"v_sub_u32 v{CVA}, s{sT0}, v{T2}")
    a(f"v_and_b32 v{T2}, 1, v{T0}")
    a(f"v_xor_b32 v{T2}, 1, v{T2}")
    a(f"v_mul_u32_u24 v{T2}, {J_O}, v{T2}")
    a(f"v_add_u32 v{CVA}, v{CVA}, v{T2}")
    a(f"v_mul_u32_u24 v{T2}, 80, v{T0}")
    a(f"v_lshlrev_b32 v{T3}, 4, v{T1}")
    a(f"v_sub_u32 v{T2}, v{T2}, v{T3}")
    a(f"s_add_u32 s{sT0}, s{sLD}, {J_H + (32 - 7) * 80 + 16}")
    a(f"v_add_u32 v{CVB}, s{sT0}, v{T2}")
    for j in range(16):
        a(f"v_mov_b32 v{CACC + j}, 0")
    a(f"s_mov_b32 s{sN}, 0")
    a("s_waitcnt vmcnt(0) lgkmcnt(0)")
    loop = a.newlabel("cl")
    a.label(loop)

    def rd(s):
        f = CF + 8 * (s % 4)
        o = (15 - s) * 8
        a(f"ds_read2_b32 {vr(f, 2)}, v{CVA} offset0:{o} offset1:{o + 1}")
        a(f"ds_read2_b32 {vr(f + 2, 2)}, v{CVA} offset0:{o + 2} offset1:{o + 3}")
        a(f"ds_read_b128 {vr(f + 4, 4)}, v{CVB} offset:{(7 - s // 2) * 80 + 32 * (1 - (s & 1))}")

    def mm(s):
        f = CF + 8 * (s % 4)
        mfma16(a, CACC, f, f + 4, CACC)
    pipelined(a, 16, rd, mm)
    a(f"v_subrev_u32 v{CVA}, 512, v{CVA}")
    a(f"v_subrev_u32 v{CVB}, 640, v{CVB}")
    a(f"s_add_u32 s{sN}, s{sN}, 1")
    a(f"s_cmp_lt_u32 s{sN}, 4")
    a(f"s_cbranch_scc1 {loop}")
    a(f"s_lshr_b32 s{sT0}, s{sWAVE}, 1")
    a(f"s_lshl_b32 s{sT0}, s{sT0}, 2")
    a(f"v_add_u32 v{VCNT}, s{sT0}, v{VCNT}")
    a(f"s_and_b32 s{sT1}, s{sWAVE}, 6")
    a(f"s_mul_i32 s{sT1}, s{sT1}, {JREG}")
    a(f"v_add_u32 v{T2}, s{sT1}, v{L16}")
    a("s_nop 3")
    fin, j0 = a.newlabel("cf"), a.newlabel("cj0")
    a(f"s_cmp_lg_u32 s{sJOB}, 1")
    a(f"s_cbranch_scc1 {fin}")
    for i in range(4):
        a(f"ds_write_b128 v{T2}, {vr(CACC + 4 * i, 4)} offset:{1024 * i}")
    a("s_waitcnt lgkmcnt(0)")
    cnt_add(a, C_RED)
    a(f"v_mov_b32 v{VCNT}, {L_CNT}")
    a("s_waitcnt lgkmcnt(0)")
    a(f"s_branch {end}")
    a.label(fin)
    a(f"s_cmp_eq_u32 s{sJOB}, 0")
    a(f"s_cbranch_scc1 {j0}")
    cnt_wait(a, C_RED, 1)
    for i in range(4):
        a(f"ds_read_b128 {vr(CF + 4 * i, 4)}, v{T2} offset:{1024 * i}")
    a("s_waitcnt lgkmcnt(0)")
    for j in range(16):
        a(f"v_add_f32 v{CACC + j}, v{CACC + j}, v{CF + j}")
    a.label(j0)
    a(f"v_mov_b32 v{VCNT}, {L_CNT}")
    a(f"v_lshlrev_b32 v{T2}, 6, v{T0}")
    a(f"v_lshl_add_u32 v{T2}, v{T1}, 3, v{T2}")
    a(f"s_add_u32 s{sT0}, s{sLD}, {2 * 1020 - 48}")
    a(f"v_sub_u32 v{T3}, s{sT0}, v{T2}")
    for g in range(4):
        a(f"ds_read_b64 {vr(CF + 2 * g, 2)}, v{T3} offset:{48 - 16 * g}")
    a(f"s_lshl_b32 s{sT0}, s{sCH}, 12")
    a(f"s_lshl_b32 s{sT1}, s{sJOB}, 10")
    a(f"s_add_u32 s{sT0}, s{sT0}, s{sT1}")
    a(f"s_add_u32 s{sT0}, s{sT0}, {WS_ZT}")
    a(f"v_lshlrev_b32 v{CVD}, 16, v{CVD}")
    a(f"s_mov_b32 s{sT3}, 0xffff0000")
    a("s_waitcnt lgkmcnt(0)")
    W = CF + 8
    for g in range(4):
        u = CF + 2 * g
        a(f"v_and_b32 v{W}, s{sT3}, v{u + 1}")
        a(f"v_lshlrev_b32 v{W + 1}, 16, v{u + 1}")
        a(f"v_and_b32 v{W + 2}, s{sT3}, v{u}")
        a(f"v_lshlrev_b32 v{W + 3}, 16, v{u}")
        for e in range(4):
            a(f"v_fmac_f32 v{CACC + 4 * g + e}, v{W + e}, v{CVD}")
        a(f"v_cvt_pk_bf16_f32 v{u}, v{CACC + 4 * g}, v{CACC + 4 * g + 1}")
        a(f"v_cvt_pk_bf16_f32 v{u + 1}, v{CACC + 4 * g + 2}, v{CACC + 4 * g + 3}")
        a(f"buffer_store_dwordx2 {vr(u, 2)}, v{T2}, {sr(SRD_WS, 4)}, s{sT0} offen offset:{16 * g} sc1")
    a(f"s_lshr_b32 s{sT1}, s{sJOB}, 1")
    a(f"s_mul_i32 s{sT1}, s{sT1}, {D}")
    a(f"s_add_u32 s{sT1}, s{sT1}, s{sCH}")
    a(f"s_lshl_b32 s{sT1}, s{sT1}, 4")
    a(f"s_add_u32 s{sT1}, s{sT1}, {WS_ZFLAG}")
    a("s_waitcnt vmcnt(0)")
    put_flag(a, sT1)
    a.label(end)


def tail(a):
    a(f"s_mul_i32 s{sT2}, s{sPB}, {64 * D * 2}")
    a(f"s_add_u32 s{sT2}, s{sT2}, s{sWG}")
    a(f"s_mov_b32 s{sXG}, s{sT2}")
    a(f"s_mov_b32 s{sN}, s{sWAVE}")
    a.label("L_t_xl")
    a(f"s_mul_i32 s{sLD}, s{sN}, 1008")
    a(f"s_mul_i32 s{sT1}, s{sN}, {7 * D * 2}")
    a(f"s_add_u32 s{sT1}, s{sT1}, s{sT2}")
    dma(a, VROW, SRD_X, sT1, sLD, L_XT)
    a(f"s_add_u32 s{sN}, s{sN}, 8")
    a(f"s_cmp_lt_u32 s{sN}, 10")
    a("s_cbranch_scc1 L_t_xl")
    lab = a.newlabel("nle")
    a(f"s_cmp_lg_u32 s{sWAVE}, 2")
    a(f"s_cbranch_scc1 {lab}")
    a(f"s_mov_b32 s{sLD}, {8 * 9216 + 8192}")
    dma(a, VWOLE, SRD_WO, sWG, sLD)
    a.label(lab)
    if not BRANCH_B:
        z_loads(a)
    a(f"s_lshl_b32 s{sT0}, s{sPB}, 8")
    a(f"s_add_u32 s{sT0}, s{sT0}, {WS_G}")
    a(f"s_and_b32 s{sT1}, s{sWAVE}, 1")
    a(f"s_lshl_b32 s{sT1}, s{sT1}, 5")
    a(f"s_sub_u32 s{sT3}, s{sWAVE}, 4")
    a(f"s_lshl_b32 s{sT3}, s{sT3}, 4")
    a(f"s_cmp_lt_u32 s{sWAVE}, 4")
    a(f"s_cselect_b32 s{sT1}, s{sT1}, s{sT3}")
    a(f"s_cselect_b32 s{sT3}, 31, 15")
    a(f"v_and_b32 v{VZ}, s{sT3}, v{LANE}")
    a(f"v_add_u32 v{VZ}, s{sT1}, v{VZ}")
    a(f"v_lshlrev_b32 v{T0}, 2, v{VZ}")
    a(f"buffer_load_dword v{VG}, v{T0}, {sr(SRD_WS, 4)}, s{sT0} offen sc1")
    for r in range(2):
        a(f"v_mov_b32 v{O[r] + 11}, v{NEGM[r]}")
    a(f"s_cmp_eq_u32 s{sKH}, 0")
    a("s_cbranch_scc1 L_kh0")
    for j in range(12):
        a(f"v_mov_b32 v{SB[0] + j}, v{O[0] + j}")
        a(f"v_mov_b32 v{SB[1] + j}, v{O[1] + j}")
    a("s_branch L_khj")
    a.label("L_kh0")
    for j in range(12):
        a(f"v_mov_b32 v{SB[0] + j}, v{O[1] + j}")
        a(f"v_mov_b32 v{SB[1] + j}, v{O[0] + j}")
    a.label("L_khj")
    a(f"s_xor_b32 s{sT0}, s{sKH}, 1")
    a(f"s_add_u32 s{sT0}, s{sT0}, s{sRT0}")
    a(f"s_add_u32 s{sRT0}, s{sRT0}, s{sKH}")
    a(f"s_mul_i32 s{sT0}, s{sT0}, 3072")
    a(f"s_add_u32 s{sT0}, s{sT0}, {L_EX}")
    a(f"v_add_u32 v{T0}, s{sT0}, v{L16}")
    a(f"s_mul_i32 s{sT0}, s{sRT0}, 3072")
    a(f"s_add_u32 s{sT0}, s{sT0}, {L_EX}")
    a(f"v_add_u32 v{T1}, s{sT0}, v{L16}")
    a("s_barrier")
    stamp(a, 4)
    for i in range(3):
        a(f"ds_write_b128 v{T0}, {vr(SB[0] + 4 * i, 4)} offset:{1024 * i}")
    a("s_waitcnt vmcnt(0) lgkmcnt(0)")
    a("s_barrier")
    keep, oth = SB[1], SB[0]
    for i in range(3):
        a(f"ds_read_b128 {vr(oth + 4 * i, 4)}, v{T1} offset:{1024 * i}")
    sPT, sHEAD = sCUR, sNXT
    a(f"s_and_b32 s{sT0}, s{sRT0}, 1")
    a(f"s_lshl_b32 s{sPT}, s{sPB}, 1")
    a(f"s_add_u32 s{sPT}, s{sPT}, s{sT0}")
    a(f"s_lshr_b32 s{sT0}, s{sRT0}, 1")
    a(f"s_lshl_b32 s{sHEAD}, s{sHQ}, 2")
    a(f"s_add_u32 s{sHEAD}, s{sHEAD}, s{sT0}")
    a(f"s_mul_i32 s{sT0}, s{sPT}, 36")
    a(f"s_add_u32 s{sT2}, s{sT0}, s{sHEAD}")
    a(f"s_lshl_b32 s{sT2}, s{sT2}, 10")
    a(f"s_add_u32 s{sT2}, s{sT2}, {WS_OF}")
    a(f"s_lshr_b32 s{sT1}, s{sHEAD}, 3")
    a(f"s_add_u32 s{sT0}, s{sT0}, s{sT1}")
    a(f"s_add_u32 s{sT0}, s{sT0}, 32")
    a(f"s_lshl_b32 s{sT0}, s{sT0}, 10")
    a(f"s_and_b32 s{sT1}, s{sHEAD}, 4")
    a(f"s_lshl_b32 s{sT1}, s{sT1}, 7")
    a(f"s_add_u32 s{sT0}, s{sT0}, s{sT1}")
    a(f"s_and_b32 s{sT1}, s{sHEAD}, 3")
    a(f"s_lshl_b32 s{sT1}, s{sT1}, 2")
    a(f"s_add_u32 s{sT0}, s{sT0}, s{sT1}")
    a(f"s_add_u32 s{sT3}, s{sT0}, {WS_OF}")
    a("s_waitcnt lgkmcnt(0)")
    a(f"v_min_f32 v{T0}, v{keep + 11}, v{oth + 11}")
    a(f"v_sub_f32 v{T1}, v{T0}, v{keep + 11}")
    a(f"v_sub_f32 v{T2}, v{T0}, v{oth + 11}")
    a(f"v_exp_f32 v{T1}, v{T1}")
    a(f"v_exp_f32 v{T2}, v{T2}")
    a("s_nop 0")
    a(f"v_mul_f32 v{T3}, v{keep + 10}, v{T1}")
    a(f"v_fmac_f32 v{T3}, v{oth + 10}, v{T2}")
    a(f"v_rcp_f32 v{T3}, v{T3}")
    a("s_nop 0")
    a(f"v_mul_f32 v{T1}, v{T1}, v{T3}")
    a(f"v_mul_f32 v{T2}, v{T2}, v{T3}")
    for j in range(10):
        a(f"v_mul_f32 v{keep + j}, v{keep + j}, v{T1}")
        a(f"v_fmac_f32 v{keep + j}, v{oth + j}, v{T2}")
    for j in range(5):
        a(f"v_cvt_pk_bf16_f32 v{P + j}, v{keep + 2 * j}, v{keep + 2 * j + 1}")
    a(f"buffer_store_dwordx4 {vr(P, 4)}, v{L16}, {sr(SRD_WS, 4)}, s{sT2} offen sc1")
    a("s_mov_b32 exec_hi, 0")
    a(f"buffer_store_dword v{P + 4}, v{L16}, {sr(SRD_WS, 4)}, s{sT3} offen sc1")
    a("s_mov_b32 exec_hi, -1")
    AF = lambda s: (72 + 4 * s) if s < 22 else (184 + 4 * (s - 22))
    a(f"s_cmp_ge_u32 s{sWAVE}, 4")
    a("s_cbranch_scc1 L_t_a16")
    afrag32_addr(a, VA0, L_WOI)
    a(f"v_add_u32 v{VXB}, {18 * 2304}, v{VA0}")
    for s in range(36):
        b, o = (VA0, s) if s < 18 else (VXB, s - 18)
        a(f"ds_read_b64_tr_b16 {vr(AF(s), 2)}, v{b} offset:{o * 2304}")
        a(f"ds_read_b64_tr_b16 {vr(AF(s) + 2, 2)}, v{b} offset:{o * 2304 + 576}")
        if s % 6 == 5:
            a("s_waitcnt lgkmcnt(2)")
    a("s_branch L_t_aj")
    a.label("L_t_a16")
    afrag16_addr(a, VA0, L_WOI)
    a(f"v_add_u32 v{VXB}, {9 * 4608}, v{VA0}")
    for s in range(18):
        b, o = (VA0, s) if s < 9 else (VXB, s - 9)
        a(f"ds_read_b64_tr_b16 {vr(AF(s), 2)}, v{b} offset:{o * 4608}")
        a(f"ds_read_b64_tr_b16 {vr(AF(s) + 2, 2)}, v{b} offset:{o * 4608 + 576}")
        if s % 6 == 5:
            a("s_waitcnt lgkmcnt(2)")
    a.label("L_t_aj")
    a("s_waitcnt vmcnt(0) lgkmcnt(0)")
    a("s_barrier")
    lab = a.newlabel("np")
    a(f"s_cmp_lg_u32 s{sWAVE}, 4")
    a(f"s_cbranch_scc1 {lab}")
    a(f"s_lshl_b32 s{sT3}, s{sPB}, 7")
    a(f"s_add_u32 s{sT3}, s{sT3}, {WS_OFLAG}")
    a(f"s_lshl_b32 s{sT2}, s{sHQ}, 4")
    a(f"s_add_u32 s{sT2}, s{sT2}, s{sT3}")
    put_flag(a, sT2)
    a(f"v_and_b32 v{T0}, 7, v{LANE}")
    a(f"v_lshlrev_b32 v{T0}, 4, v{T0}")
    poll_flags(a, sT3, T0, 1, sleep=1)
    a.label(lab)
    if BRANCH_B:
        lab = a.newlabel("nz")
        a(f"s_cmp_lg_u32 s{sWAVE}, 5")
        a(f"s_cbranch_scc1 {lab}")
        a(f"s_lshr_b32 s{sT3}, s{sPB}, 4")
        a(f"s_mul_i32 s{sT3}, s{sT3}, {D}")
        a(f"s_mul_i32 s{sT2}, s{sHQ}, 72")
        a(f"s_add_u32 s{sT3}, s{sT3}, s{sT2}")
        a(f"s_lshl_b32 s{sT3}, s{sT3}, 4")
        a(f"s_add_u32 s{sT3}, s{sT3}, {WS_ZFLAG}")
        poll_flags(a, sT3, L16, 1, sleep=1)
        a(f"s_add_u32 s{sT3}, s{sT3}, 128")
        poll_flags(a, sT3, L16, 1, sleep=1)
        z_loads(a, True)
        a.label(lab)
    a("s_barrier")
    stamp(a, 6)
    a(f"s_lshr_b32 s{sT0}, s{sWAVE}, 2")
    a(f"s_mul_i32 s{sLD}, s{sT0}, {36 * 1024}")
    a(f"s_and_b32 s{sT0}, s{sWAVE}, 3")
    a(f"s_lshl_b32 s{sT0}, s{sT0}, 10")
    a(f"s_add_u32 s{sLD}, s{sLD}, s{sT0}")
    a(f"s_mul_i32 s{sT1}, s{sPB}, {72 * 1024}")
    a(f"s_add_u32 s{sT1}, s{sT1}, {WS_OF}")
    a(f"s_add_u32 s{sT1}, s{sT1}, s{sLD}")
    for i in range(9):
        dma(a, L16, SRD_WS, sT1, sLD, sc1=True)
        a(f"s_add_u32 s{sLD}, s{sLD}, 4096")
        a(f"s_add_u32 s{sT1}, s{sT1}, 4096")
    TACC, BF = 40, 56
    for j in range(16):
        a(f"v_mov_b32 v{TACC + j}, 0")
    a(f"s_cmp_ge_u32 s{sWAVE}, 4")
    a("s_cbranch_scc1 L_t_m16")
    a(f"s_and_b32 s{sT0}, s{sWAVE}, 1")
    a(f"s_mul_i32 s{sT0}, s{sT0}, {36 * 1024}")
    a(f"v_add_u32 v{VXB}, s{sT0}, v{L16}")
    for g in range(3):
        a(f"s_waitcnt vmcnt({6 - 3 * g})")
        a("s_barrier")
        pipelined(a, 12,
                  lambda s: a(f"ds_read_b128 {vr(BF + 4 * (s % 4), 4)}, v{VXB} offset:{(12 * g + s) * 1024}"),
                  lambda s: mfma16(a, TACC, AF(12 * g + s), BF + 4 * (s % 4), TACC), per=1)
    stamp(a, 7)
    epilogue(a, TACC, True)
    a("s_branch L_t_store")
    a.label("L_t_m16")
    a(f"v_lshrrev_b32 v{T0}, 5, v{LANE}")
    a(f"v_bfe_u32 v{T1}, v{LANE}, 4, 1")
    a(f"v_and_b32 v{T2}, 31, v{VZ}")
    a(f"v_lshl_add_u32 v{T2}, v{T1}, 5, v{T2}")
    a(f"v_lshlrev_b32 v{T2}, 4, v{T2}")
    a(f"v_lshl_add_u32 v{T2}, v{T0}, 10, v{T2}")
    a(f"v_lshrrev_b32 v{T3}, 5, v{VZ}")
    a(f"v_mul_u32_u24 v{T3}, {36 * 1024}, v{T3}")
    a(f"v_add_u32 v{VXB}, v{T2}, v{T3}")
    for g in range(3):
        a(f"s_waitcnt vmcnt({6 - 3 * g})")
        a("s_barrier")
        pipelined(a, 6,
                  lambda s: a(f"ds_read_b128 {vr(BF + 4 * (s % 4), 4)}, v{VXB} offset:{(6 * g + s) * 2048}"),
                  lambda s: mfma1616(a, TACC, AF(6 * g + s), BF + 4 * (s % 4)), per=1)
    epilogue(a, TACC, False)
    a.label("L_t_store")
    a("s_waitcnt lgkmcnt(0)")
    a("s_barrier")
    a(f"s_mov_b32 s{sN}, s{sWAVE}")
    a.label("L_t_sl")
    a(f"s_mul_i32 s{sT0}, s{sN}, 1008")
    a(f"s_add_u32 s{sT0}, s{sT0}, {L_XT}")
    a(f"v_add_u32 v{T0}, s{sT0}, v{L16}")
    a(f"ds_read_b128 {vr(BF, 4)}, v{T0}")
    a(f"s_mul_i32 s{sT1}, s{sN}, {7 * D * 2}")
    a(f"s_add_u32 s{sT1}, s{sT1}, s{sXG}")
    a(f"s_cmp_eq_u32 s{sN}, 9")
    a(f"s_cselect_b32 s{sT0}, 9, 63")
    a(f"v_cmp_gt_u32 vcc, s{sT0}, v{LANE}")
    a(f"s_and_saveexec_b64 {sr(sEX, 2)}, vcc")
    a("s_waitcnt lgkmcnt(0)")
    a(f"buffer_store_dwordx4 {vr(BF, 4)}, v{VROW}, {sr(SRD_OUT, 4)}, s{sT1} offen")
    a(f"s_mov_b64 exec, {sr(sEX, 2)}")
    a(f"s_add_u32 s{sN}, s{sN}, 8")
    a(f"s_cmp_lt_u32 s{sN}, 10")
    a("s_cbranch_scc1 L_t_sl")


def z_loads(a, single=False):
    a(f"v_lshrrev_b32 v{T0}, 3, v{LANE}")
    a(f"v_and_b32 v{T1}, 7, v{LANE}")
    a(f"v_lshlrev_b32 v{T0}, 12, v{T0}")
    a(f"v_lshl_add_u32 v{T0}, v{T1}, 4, v{T0}")
    a(f"s_mul_i32 s{sT2}, s{sHQ}, {72 * 4096}")
    a(f"s_lshl_b32 s{sT0}, s{sPB}, 7")
    a(f"s_add_u32 s{sT2}, s{sT2}, s{sT0}")
    a(f"s_add_u32 s{sT2}, s{sT2}, {WS_ZT}")
    if single:
        a(f"s_mov_b32 s{sN}, 0")
    else:
        a(f"s_xor_b32 s{sN}, s{sWAVE}, 7")
    lab = a.newlabel("zl")
    a.label(lab)
    a(f"s_lshl_b32 s{sLD}, s{sN}, 10")
    a(f"s_lshl_b32 s{sT1}, s{sN}, 15")
    a(f"s_add_u32 s{sT1}, s{sT1}, s{sT2}")
    dma(a, T0, SRD_WS, sT1, sLD, L_ZT, sc1=True)
    a(f"s_add_u32 s{sN}, s{sN}, {1 if single else 8}")
    a(f"s_cmp_lt_u32 s{sN}, 9")
    a(f"s_cbranch_scc1 {lab}")


def epilogue(a, acc, full):
    E0, XRr, ZR = 16, 32, 34
    if full:
        a(f"v_lshrrev_b32 v{T0}, 5, v{LANE}")
        a(f"s_lshr_b32 s{sT2}, s{sWAVE}, 1")
        a(f"s_lshl_b32 s{sT2}, s{sT2}, 5")
    else:
        a(f"v_bfe_u32 v{T0}, v{LANE}, 4, 1")
        a(f"s_mov_b32 s{sT2}, 64")
    a(f"v_mul_u32_u24 v{T1}, 144, v{VZ}")
    a(f"v_lshl_add_u32 v{T1}, v{T0}, 3, v{T1}")
    a(f"s_lshl_b32 s{sT0}, s{sT2}, 1")
    a(f"s_add_u32 s{sT0}, s{sT0}, {L_XT}")
    a(f"v_add_u32 v{T1}, s{sT0}, v{T1}")
    a(f"v_bfe_u32 v{T2}, v{LANE}, 2, 2")
    a(f"v_lshl_add_u32 v{T2}, v{T0}, 2, v{T2}")
    a(f"v_lshlrev_b32 v{T2}, 7, v{T2}")
    a(f"v_and_b32 v{T3}, 48, v{VZ}")
    a(f"v_lshl_add_u32 v{T2}, v{T3}, 1, v{T2}")
    a(f"v_and_b32 v{T3}, 3, v{LANE}")
    a(f"v_lshl_add_u32 v{T2}, v{T3}, 3, v{T2}")
    a(f"s_lshl_b32 s{sT0}, s{sT2}, 7")
    a(f"s_add_u32 s{sT0}, s{sT0}, {L_ZT}")
    a(f"v_add_u32 v{T2}, s{sT0}, v{T2}")
    a(f"v_sub_f32 v{T4}, 1.0, v{VG}")
    a(f"v_cvt_pk_bf16_f32 v{T4}, v{T4}, v{T4}")
    a(f"v_and_b32 v{T4}, 0xffff0000, v{T4}")
    a(f"s_mov_b32 s{sT3}, 0xffff0000")
    ng = 4 if full else 1
    XZ = 184
    for g in range(ng):
        a(f"ds_read_b64 {vr(XZ + 4 * g, 2)}, v{T1} offset:{16 * g}")
        a(f"ds_read_b64_tr_b16 {vr(XZ + 4 * g + 2, 2)}, v{T2} offset:{1024 * g}")
    for g in range(ng):
        a(f"v_cvt_pk_bf16_f32 v{E0}, v{acc + 4 * g}, v{acc + 4 * g + 1}")
        a(f"v_cvt_pk_bf16_f32 v{E0 + 1}, v{acc + 4 * g + 2}, v{acc + 4 * g + 3}")
        for i in range(2):
            a(f"v_lshlrev_b32 v{E0 + 2 + 2 * i}, 16, v{E0 + i}")
            a(f"v_and_b32 v{E0 + 3 + 2 * i}, s{sT3}, v{E0 + i}")
        for e in range(4):
            a(f"v_mul_f32 v{E0 + 2 + e}, v{VG}, v{E0 + 2 + e}")
        if g == 0:
            a("s_waitcnt lgkmcnt(0)")
        for i in range(2):
            a(f"v_lshlrev_b32 v{E0 + 6 + 2 * i}, 16, v{XZ + 4 * g + i}")
            a(f"v_and_b32 v{E0 + 7 + 2 * i}, s{sT3}, v{XZ + 4 * g + i}")
            a(f"v_lshlrev_b32 v{E0 + 10 + 2 * i}, 16, v{XZ + 4 * g + 2 + i}")
            a(f"v_and_b32 v{E0 + 11 + 2 * i}, s{sT3}, v{XZ + 4 * g + 2 + i}")
        for e in range(4):
            a(f"v_mul_f32 v{E0 + 6 + e}, v{E0 + 6 + e}, v{E0 + 10 + e}")
            a(f"v_fmac_f32 v{E0 + 2 + e}, v{T4}, v{E0 + 6 + e}")
        a(f"v_cvt_pk_bf16_f32 v{XRr}, v{E0 + 2}, v{E0 + 3}")
        a(f"v_cvt_pk_bf16_f32 v{XRr + 1}, v{E0 + 4}, v{E0 + 5}")
        if not full:
            a("s_mov_b32 exec_hi, 0")
        a(f"ds_write_b64 v{T1}, {vr(XRr, 2)} offset:{16 * g}")
        if not full:
            a("s_mov_b32 exec_hi, -1")


def gen_kz(a, name):
    kernel_begin(a, name)
    a("s_cmp_ge_u32 s2, 256")
    a("s_cbranch_scc1 L_end")
    a("s_load_dwordx8 s[64:71], s[0:1], 0")
    a(f"s_load_dwordx2 {sr(sGW, 2)}, s[0:1], 88")
    a(f"s_load_dwordx2 {sr(sWS, 2)}, s[0:1], 112")
    a(f"s_load_dwordx2 {sr(sDBG, 2)}, s[0:1], 104")
    a(f"s_load_dwordx2 {sr(sOUT, 2)}, s[0:1], 96")
    a(f"s_load_dwordx2 {sr(sWO, 2)}, s[0:1], 32")
    a(f"s_memrealtime {sr(sEX, 2)}")
    stamp(a, 0)
    a(f"v_lshrrev_b32 v{T0}, 6, v0")
    a(f"v_and_b32 v{LANE}, 63, v0")
    a(f"v_readfirstlane_b32 s{sWAVE}, v{T0}")
    a(f"s_and_b32 s{sT0}, s2, 7")
    a(f"s_lshr_b32 s{sT1}, s2, 3")
    a(f"s_and_b32 s{sHQ}, s{sT1}, 7")
    a(f"s_lshr_b32 s{sT1}, s{sT1}, 3")
    a(f"s_lshl_b32 s{sPB}, s{sT0}, 2")
    a(f"s_add_u32 s{sPB}, s{sPB}, s{sT1}")
    a(f"s_mov_b32 s{sHALF}, 0")
    a(f"s_mov_b32 s{sHALF + 1}, -1")
    a(f"s_lshr_b32 s{sKH}, s{sWAVE}, 2")
    a(f"s_and_b32 s{sRT0}, s{sWAVE}, 3")
    a(f"s_lshl_b32 s{sRT0}, s{sRT0}, 1")
    a(f"s_and_b32 s{sSUB}, s{sHQ}, 3")
    a(f"s_lshl_b32 s{sT0}, s{sPB}, 1")
    a(f"s_add_u32 s{sT0}, s{sT0}, s{sHQ}")
    a(f"s_mul_i32 s{sT1}, s{sT0}, 7282")
    a(f"s_lshr_b32 s{sT1}, s{sT1}, 16")
    a(f"s_mul_i32 s{sT1}, s{sT1}, 9")
    a(f"s_sub_u32 s{sST0}, s{sT0}, s{sT1}")
    a(f"v_lshlrev_b32 v{L16}, 4, v{LANE}")
    a(f"v_lshlrev_b32 v{L8}, 3, v{LANE}")
    a(f"v_mov_b32 v{VCNT}, {L_CNT}")
    a(f"v_mov_b32 v{VONE}, 1")
    a(f"v_lshrrev_b32 v{T0}, 3, v{LANE}")
    a(f"v_lshrrev_b32 v{T1}, 4, v{LANE}")
    a(f"v_and_b32 v{T2}, 7, v{LANE}")
    a(f"v_xor_b32 v{T2}, v{T2}, v{T1}")
    a(f"v_mul_u32_u24 v{T0}, {D * 2}, v{T0}")
    a(f"v_lshl_add_u32 v{VDX0}, v{T2}, 4, v{T0}")
    a(f"v_xor_b32 v{VDX1}, 64, v{VDX0}")
    a(f"v_add_u32 v{VDX1}, {8 * D * 2}, v{VDX1}")
    a(f"v_lshrrev_b32 v{T0}, 2, v{LANE}")
    a(f"v_and_b32 v{T1}, 3, v{LANE}")
    a(f"v_mul_u32_u24 v{T0}, 36, v{T0}")
    a(f"v_lshl_add_u32 v{VDK}, v{T1}, 4, v{T0}")
    a(f"s_lshl_b32 s{sT0}, s{sPB}, 2")
    a(f"s_add_u32 s{sT1}, s{sT0}, s{sWAVE}")
    a(f"s_mul_i32 s{sXG}, s{sT1}, {16 * D * 2}")
    a(f"s_mul_i32 s{sWG}, s{sHQ}, 144")
    a("s_waitcnt lgkmcnt(0)")
    srd(a, SRD_X, sX, sX + 1, S * D * 2)
    a(f"s_cmp_lt_u32 s{sHQ}, 4")
    a(f"s_cselect_b32 s{sT0}, s{sWK}, s{sWV}")
    a(f"s_cselect_b32 s{sT1}, s{sWK + 1}, s{sWV + 1}")
    srd(a, SRD_KVW, sT0, sT1, D * DH * 2)
    srd(a, SRD_GW, sGW, sGW + 1, D * 2)
    srd(a, SRD_WQ, sWQ, sWQ + 1, D * D * 2)
    srd(a, SRD_WS, sWS, sWS + 1, WS_END)
    srd(a, SRD_DMA, sWS, sWS + 1, WS_KV + KV_BYTES)
    a(f"s_cmp_lt_u32 s{sWAVE}, 4")
    a("s_cbranch_scc1 L_lo")
    a("s_setprio 3")
    a(f"s_cmp_eq_u32 s{sWAVE}, 4")
    a("s_cbranch_scc1 L_w4")
    team_issue(a)
    a("s_barrier")
    team_compute(a)
    a("s_branch L_q_done")
    a.label("L_w4")
    a(f"v_mov_b32 v{T0}, 0")
    a(f"v_lshl_add_u32 v{T1}, v{LANE}, 2, v{VCNT}")
    a(f"ds_write_b32 v{T1}, v{T0}")
    a(f"s_cmp_lg_u32 s2, 0")
    a("s_cbranch_scc1 L_notag")
    a(f"s_or_b32 s{sEX}, s{sEX}, 1")
    a(f"v_mov_b32 v{TAG}, s{sEX}")
    a(f"v_mov_b32 v{TAG + 1}, s{sEX + 1}")
    a("s_mov_b64 exec, 1")
    a(f"global_store_dwordx2 v{T0}, {vr(TAG, 2)}, {sr(sDBG, 2)} sc1")
    a("s_mov_b64 exec, -1")
    a.label("L_notag")
    a("s_waitcnt lgkmcnt(0)")
    a("s_barrier")
    cnt_wait(a, C_RDY + 4, 4)
    get_tag(a)
    a(f"s_mov_b32 s{sT3}, {WS_FLAG}")
    poll_flags(a, sT3, L16, 4)
    stamp(a, 5)
    a("s_setprio 0")
    a("s_branch L_q_done")
    a.label("L_lo")
    for i, dst in enumerate((VDW0, VDW1)):
        a(f"s_lshl_b32 s{sT0}, s{sWAVE}, 7")
        a(f"s_add_u32 s{sT0}, s{sT0}, {64 * i}")
        a(f"v_add_u32 v{T0}, s{sT0}, v{LANE}")
        wpat(a, dst, T0)
    a(f"v_add_u32 v{T0}, 512, v{LANE}")
    wpat(a, VDE, T0)
    a("s_barrier")
    stream(a, 0, 7, False)
    q_full(a)
    a("s_branch L_q_done")
    a.label("L_q_t2")
    q_t2(a)
    a.label("L_q_done")
    a("s_barrier")
    stamp(a, 8)
    a(f"v_mov_b32 v{VDMA}, v{L16}")
    a(f"s_lshl_b32 s{sL}, s{sWAVE}, 10")
    a(f"s_add_u32 s{sG}, s{sL}, {WS_KV}")
    a(f"s_mov_b32 s{sGSTEP}, 8192")
    a(f"s_mov_b32 s{sLSTEP}, 8192")
    a(f"s_mov_b32 s{sREM}, 19")
    for i in range(5):
        dma_slot(a)
    a(f"v_and_b32 v{T0}, 31, v{LANE}")
    a(f"v_lshrrev_b32 v{T1}, 5, v{LANE}")
    a(f"v_mul_u32_u24 v{T2}, {QPITCH}, v{T0}")
    a(f"s_mul_i32 s{sT0}, s{sRT0}, 18")
    a(f"s_add_u32 s{sT0}, s{sT0}, {L_QS}")
    a(f"v_add_u32 v{T2}, s{sT0}, v{T2}")
    a(f"v_lshl_add_u32 v{T3}, v{T1}, 4, v{T2}")
    a(f"v_add_u32 v{T4}, {32 * QPITCH}, v{T3}")
    for r, base in ((0, T3), (1, T4)):
        a(f"ds_read2_b32 {vr(Q1[r], 2)}, v{base} offset0:0 offset1:1")
        a(f"ds_read2_b32 {vr(Q1[r] + 2, 2)}, v{base} offset0:2 offset1:3")
        a(f"ds_read_b32 v{QV[r] + 1}, v{T2} offset:{32 + r * 32 * QPITCH}")
    a(f"v_min_u32 v{VSL}, 19, v{T0}")
    a(f"v_cmp_eq_u32 vcc, 30, v{T0}")
    a("s_nop 1")
    a(f"v_cndmask_b32 v{VSL}, v{VSL}, 18, vcc")
    a(f"v_lshlrev_b32 v{VSL}, 4, v{VSL}")
    a(f"v_mul_u32_u24 v{T2}, 320, v{T1}")
    a(f"v_add_u32 v{VSL}, v{VSL}, v{T2}")
    srd(a, SRD_WO, sWO, sWO + 1, D * D * 2)
    srd(a, SRD_OUT, sOUT, sOUT + 1, S * D * 2)
    a(f"s_lshl_b32 s{sT0}, s{sWAVE}, 6")
    a(f"v_add_u32 v{T0}, s{sT0}, v{LANE}")
    wopat(a, VWO, VWOL, T0)
    a(f"v_add_u32 v{T0}, 512, v{LANE}")
    wopat(a, VWOE, VWOLE, T0)
    a(f"v_mul_u32_u24 v{T0}, 7282, v{LANE}")
    a(f"v_lshrrev_b32 v{T0}, 16, v{T0}")
    a(f"v_mul_u32_u24 v{T1}, 9, v{T0}")
    a(f"v_sub_u32 v{T1}, v{LANE}, v{T1}")
    a(f"v_mul_u32_u24 v{T0}, {D * 2}, v{T0}")
    a(f"v_lshl_add_u32 v{VROW}, v{T1}, 4, v{T0}")
    if BRANCH_B:
        a("s_load_dwordx8 s[64:71], s[0:1], 48")
        a(f"s_load_dwordx2 {sr(sDP, 2)}, s[0:1], 80")
        job_assign(a)
        a(f"v_mov_b32 v{VUS}, 0")
    a("s_waitcnt lgkmcnt(0)")
    attention(a)
    tail(a)
    if DIAG:
        a("s_waitcnt vmcnt(0)")
    stamp(a, 9)
    dump_stamps(a)
    a.label("L_end")
    a("s_endpgm")
    out_of_line(a)
    return dict(grid=256, block=512, lds=163840, vgpr=NVGPR, sgpr=102)
```
